```python
import torch

def _softmax(x, axis=-1):
    return torch.softmax(x, dim=axis)
def _gelu(x):
    return torch.nn.functional.gelu(x, approximate="tanh")
def _silu(x):
    return torch.nn.functional.silu(x)
def _sigmoid(x):
    return torch.sigmoid(x)
def _layernorm(x, axis=-1, eps=1e-5):
    m = x.mean(dim=axis, keepdim=True)
    v = x.var(dim=axis, keepdim=True, unbiased=False)
    return (x - m) / torch.sqrt(v + eps)
def _scatter_add(tgt, idx, src, axis=0):
    return tgt.clone().index_add_(axis, idx, src)
def _segment_sum(src, seg, n):
    out = torch.zeros((n,) + src.shape[1:], dtype=src.dtype)
    return out.index_add_(0, seg, src)
def _pad(x, pw):
    flat = tuple(v for pair in reversed(pw) for v in pair)
    return torch.nn.functional.pad(x, flat)

kernel_name = 'standalone__rmsnorm__sampling'

def setup_inputs():

    _w = (lambda a: (lambda t: t.to(torch.bfloat16) if t.is_floating_point() else t)(torch.as_tensor(a)))
    B, S, D = 1024, 8, 640
    return {
        "x": _w((lambda *s: torch.randn(*s, dtype=torch.bfloat16) * 0.05)(B, S, D)),
        "g": _w((lambda *s: torch.randn(*s, dtype=torch.bfloat16) * 0.05)(D) + 1.0),
    }

def reference(x, g):
    rms = torch.sqrt((x * x).mean(axis=-1, keepdims=True) + 1e-6)
    return x / rms * g
```

```python
import sys, struct

NAME = "standalone__rmsnorm__sampling"
ROWS = 8192
ROWB = 1280

HEADER = """; Kernarg layout for this problem (40 bytes, ptrs only, base s[0:1]):
"""

def f32hex(x):
    return "0x%08x" % struct.unpack("<I", struct.pack("<f", x))[0]

def gen(waves=4, groups=1, ldflag="", stflag="", gflag="", mimic=True, gfirst=False):
    threads = waves * 64
    rows_per_wg = waves * 4 * groups
    nwg = ROWS // rows_per_wg
    L = []
    A = L.append
    A(HEADER + "; @launch grid=(%d,1,1) block=(%d,1,1) lds=0" % (nwg, threads))
    A('.amdgcn_target "amdgcn-amd-amdhsa--gfx950"')
    A(".text")
    A(".globl %s_kernel" % NAME)
    A(".p2align 8")
    A(".type %s_kernel,@function" % NAME)
    A("%s_kernel:" % NAME)
    A("    s_load_dwordx4 s[4:7], s[0:1], 0")
    A("    s_load_dwordx2 s[8:9], s[0:1], 16")
    A("    s_cmp_ge_u32 s2, %d" % nwg)
    A("    s_cbranch_scc1 L_end")
    A("    v_and_b32 v1, 15, v0")
    A("    v_lshlrev_b32 v1, 4, v1")
    A("    v_lshrrev_b32 v2, 4, v0")
    if groups > 1:
        A("    v_lshrrev_b32 v3, 6, v0")
        A("    v_and_b32 v2, 3, v2")
        A("    v_mad_u32_u24 v2, v3, %d, v2" % (4 * groups))
    A("    s_mul_i32 s3, s2, %d" % (rows_per_wg * ROWB))
    A("    v_mul_u32_u24 v2, %d, v2" % ROWB)
    A("    v_add3_u32 v2, v2, v1, s3")
    if groups > 1:
        for gi in range(1, groups):
            A("    v_add_u32 v%d, %d, v2" % (2 + gi, gi * 4 * ROWB))
    A("    s_mov_b32 s10, 0xffff0000")
    XB = 8
    GB = XB + 20 * groups
    GU = GB + 20
    T = GU + 40
    A("    s_waitcnt lgkmcnt(0)")
    def loadg():
        for k in range(5):
            A("    global_load_dwordx4 v[%d:%d], v1, s[6:7] offset:%d %s" % (GB + 4 * k, GB + 4 * k + 3, 256 * k, gflag))
    if gfirst: loadg()
    for gi in range(groups):
        for k in range(5):
            r = XB + 20 * gi + 4 * k
            A("    global_load_dwordx4 v[%d:%d], v%d, s[4:5] offset:%d %s" % (r, r + 3, 2 + gi, 256 * k, ldflag))
        if gi == 0 and not gfirst: loadg()
    total = 5 * groups + 5
    order = []
    if gfirst: order += [("g", k) for k in range(5)]
    for gi in range(groups):
        order += [("x", gi, k) for k in range(5)]
        if gi == 0 and not gfirst: order += [("g", k) for k in range(5)]
    stores_issued = 0
    def wait_for(item):
        idx = order.index(item)
        n = total - (idx + 1) + stores_issued
        A("    s_waitcnt vmcnt(%d)" % n)
    ACC = T; ACC2 = T + 1; SC = T + 2
    assert SC % 2 == 0
    TM = T + 4
    gdone = False
    for gi in range(groups):
        if gfirst and not gdone:
            wait_for(("g", 4))
            for k in range(20):
                A("    v_lshlrev_b32 v%d, 16, v%d" % (GU + 2 * k, GB + k))
                A("    v_and_b32 v%d, s10, v%d" % (GU + 2 * k + 1, GB + k))
            gdone = True
        A("    v_mov_b32 v%d, 0" % ACC)
        A("    v_mov_b32 v%d, 0" % ACC2)
        for k in range(5):
            wait_for(("x", gi, k))
            r = XB + 20 * gi + 4 * k
            for j in range(4):
                a = ACC if j % 2 == 0 else ACC2
                A("    v_dot2c_f32_bf16 v%d, v%d, v%d" % (a, r + j, r + j))
        A("    s_nop 2")
        A("    v_add_f32 v%d, v%d, v%d" % (ACC, ACC, ACC2))
        for m in ["quad_perm:[1,0,3,2]", "quad_perm:[2,3,0,1]", "row_half_mirror", "row_mirror"]:
            A("    s_nop 1")
            A("    v_add_f32_dpp v%d, v%d, v%d %s row_mask:0xf bank_mask:0xf" % (ACC, ACC, ACC, m))
        if mimic:
            A("    v_mul_f32 v%d, %s, v%d" % (ACC, f32hex(1.0 / 640), ACC))
            A("    v_cvt_pk_bf16_f32 v%d, v%d, v%d" % (ACC, ACC, ACC))
            A("    v_and_b32 v%d, s10, v%d" % (ACC, ACC))
            A("    v_add_f32 v%d, %s, v%d" % (ACC, f32hex(1e-6), ACC))
            A("    v_cvt_pk_bf16_f32 v%d, v%d, v%d" % (ACC, ACC, ACC))
            A("    v_and_b32 v%d, s10, v%d" % (ACC, ACC))
            A("    v_sqrt_f32 v%d, v%d" % (ACC, ACC))
            A("    s_nop 0")
            A("    v_cvt_pk_bf16_f32 v%d, v%d, v%d" % (ACC, ACC, ACC))
            A("    v_and_b32 v%d, s10, v%d" % (ACC, ACC))
            A("    v_rcp_f32 v%d, v%d" % (SC, ACC))
        else:
            A("    v_mov_b32 v%d, %s" % (ACC2, f32hex(1e-6)))
            A("    v_fmac_f32 v%d, %s, v%d" % (ACC2, f32hex(1.0 / 640), ACC))
            A("    v_rsq_f32 v%d, v%d" % (SC, ACC2))
        if not gdone:
            wait_for(("g", 4))
            for k in range(20):
                A("    v_lshlrev_b32 v%d, 16, v%d" % (GU + 2 * k, GB + k))
                A("    v_and_b32 v%d, s10, v%d" % (GU + 2 * k + 1, GB + k))
            gdone = True
        else:
            A("    s_nop 0")
        for k in range(5):
            r = XB + 20 * gi + 4 * k
            for j in range(4):
                t = TM + 2 * j
                A("    v_lshlrev_b32 v%d, 16, v%d" % (t, r + j))
                A("    v_and_b32 v%d, s10, v%d" % (t + 1, r + j))
            for j in range(4):
                t = TM + 2 * j
                A("    v_pk_mul_f32 v[%d:%d], v[%d:%d], v[%d:%d] op_sel_hi:[1,0]" % (t, t + 1, t, t + 1, SC, SC + 1))
            if mimic:
                for j in range(4):
                    t = TM + 2 * j
                    A("    v_cvt_pk_bf16_f32 v%d, v%d, v%d" % (r + j, t, t + 1))
                for j in range(4):
                    t = TM + 2 * j
                    A("    v_lshlrev_b32 v%d, 16, v%d" % (t, r + j))
                    A("    v_and_b32 v%d, s10, v%d" % (t + 1, r + j))
            for j in range(4):
                t = TM + 2 * j
                g = GU + 2 * (4 * k + j)
                A("    v_pk_mul_f32 v[%d:%d], v[%d:%d], v[%d:%d]" % (t, t + 1, t, t + 1, g, g + 1))
            for j in range(4):
                t = TM + 2 * j
                A("    v_cvt_pk_bf16_f32 v%d, v%d, v%d" % (r + j, t, t + 1))
            A("    global_store_dwordx4 v%d, v[%d:%d], s[8:9] offset:%d %s" % (2 + gi, r, r + 3, 256 * k, stflag))
            stores_issued += 1
    A("L_end:")
    A("    s_endpgm")
    nv = TM + 8
    A('.section .rodata,"a"')
    A(".p2align 6")
    A(".amdhsa_kernel %s_kernel" % NAME)
    A("  .amdhsa_next_free_vgpr %d" % nv)
    A("  .amdhsa_next_free_sgpr 16")
    A("  .amdhsa_accum_offset %d" % ((nv + 3) // 4 * 4))
    A("  .amdhsa_group_segment_fixed_size 0")
    A("  .amdhsa_kernarg_size 40")
    A("  .amdhsa_user_sgpr_count 2")
    A("  .amdhsa_user_sgpr_kernarg_segment_ptr 1")
    A("  .amdhsa_system_sgpr_workgroup_id_x 1")
    A("  .amdhsa_float_denorm_mode_32 3")
    A(".end_amdhsa_kernel")
    return "\n".join(L) + "\n"

if __name__ == "__main__":
    import json
    out = sys.argv[1]
    kw = json.loads(sys.argv[2]) if len(sys.argv) > 2 else {}
    open(out, "w").write(gen(**kw))
```

```python
import sys, struct

NAME = "standalone__rmsnorm__sampling"
ROWS = 8192
ROWB = 1280

HEADER = """; Kernarg layout for this problem (40 bytes, ptrs only, base s[0:1]):
"""

def f32hex(x):
    return "0x%08x" % struct.unpack("<I", struct.pack("<f", x))[0]

def gen(waves=4, groups=1, ldflag="", stflag="", gflag="", mimic=True, gfirst=False, stamp=False, spin=0, probe=None, amp=10, own=False):
    threads = waves * 64
    rows_per_wg = waves * 4 * groups
    nwg = ROWS // rows_per_wg
    L = []
    A = L.append
    A(HEADER + "; @launch grid=(%d,1,1) block=(%d,1,1) lds=0" % (nwg, threads))
    A('.amdgcn_target "amdgcn-amd-amdhsa--gfx950"')
    A(".text")
    A(".globl %s_kernel" % NAME)
    A(".p2align 8")
    A(".type %s_kernel,@function" % NAME)
    A("%s_kernel:" % NAME)
    def ST(i):
        if stamp or (probe is not None and i in (0, probe)): A("    s_memrealtime s[%d:%d]" % (20 + 2 * i, 21 + 2 * i))
    ST(0)
    if spin: A("    s_memrealtime s[40:41]")
    if probe is not None:
        A("    s_load_dwordx2 s[12:13], s[0:1], 24")
        A("    v_mov_b32 v7, v0")
    if stamp:
        A("    s_load_dwordx2 s[12:13], s[0:1], 32")
        A("    v_mov_b32 v7, v0")
    A("    s_load_dwordx4 s[4:7], s[0:1], 0")
    A("    s_load_dwordx2 s[8:9], s[0:1], 16")
    A("    s_cmp_ge_u32 s2, %d" % nwg)
    A("    s_cbranch_scc1 L_end")
    A("    v_and_b32 v1, 15, v0")
    A("    v_lshlrev_b32 v1, 4, v1")
    A("    v_lshrrev_b32 v2, 4, v0")
    if groups > 1:
        A("    v_lshrrev_b32 v3, 6, v0")
        A("    v_and_b32 v2, 3, v2")
        A("    v_mad_u32_u24 v2, v3, %d, v2" % (4 * groups))
    A("    s_mul_i32 s3, s2, %d" % (rows_per_wg * ROWB))
    A("    v_mul_u32_u24 v2, %d, v2" % ROWB)
    A("    v_add3_u32 v2, v2, v1, s3")
    if groups > 1:
        for gi in range(1, groups):
            A("    v_add_u32 v%d, %d, v2" % (2 + gi, gi * 4 * ROWB))
    A("    s_mov_b32 s10, 0xffff0000")
    XB = 8
    GB = XB + 20 * groups
    GU = GB + 20
    T = GU + 40
    A("    s_waitcnt lgkmcnt(0)")
    ST(1)
    def loadg():
        for k in range(5):
            A("    global_load_dwordx4 v[%d:%d], v1, s[6:7] offset:%d %s" % (GB + 4 * k, GB + 4 * k + 3, 256 * k, gflag))
    if gfirst: loadg()
    for gi in range(groups):
        for k in range(5):
            r = XB + 20 * gi + 4 * k
            A("    global_load_dwordx4 v[%d:%d], v%d, s[4:5] offset:%d %s" % (r, r + 3, 2 + gi, 256 * k, ldflag))
        if gi == 0 and not gfirst: loadg()
    ST(2)
    total = 5 * groups + 5
    order = []
    if gfirst: order += [("g", k) for k in range(5)]
    for gi in range(groups):
        order += [("x", gi, k) for k in range(5)]
        if gi == 0 and not gfirst: order += [("g", k) for k in range(5)]
    stores_issued = 0
    def wait_for(item):
        idx = order.index(item)
        n = total - (idx + 1) + stores_issued
        A("    s_waitcnt vmcnt(%d)" % n)
    ACC = T; ACC2 = T + 1; SC = T + 2
    assert SC % 2 == 0
    TM = T + 4
    gdone = False
    for gi in range(groups):
        if gfirst and not gdone:
            wait_for(("g", 4))
            for k in range(20):
                A("    v_lshlrev_b32 v%d, 16, v%d" % (GU + 2 * k, GB + k))
                A("    v_and_b32 v%d, s10, v%d" % (GU + 2 * k + 1, GB + k))
            gdone = True
        A("    v_mov_b32 v%d, 0" % ACC)
        A("    v_mov_b32 v%d, 0" % ACC2)
        for k in range(5):
            wait_for(("x", gi, k))
            if gi == 0 and k == 0: ST(3)
            if gi == groups - 1 and k == 4: ST(4)
            r = XB + 20 * gi + 4 * k
            for j in range(4):
                a = ACC if j % 2 == 0 else ACC2
                A("    v_dot2c_f32_bf16 v%d, v%d, v%d" % (a, r + j, r + j))
        A("    s_nop 2")
        A("    v_add_f32 v%d, v%d, v%d" % (ACC, ACC, ACC2))
        for m in ["quad_perm:[1,0,3,2]", "quad_perm:[2,3,0,1]", "row_half_mirror", "row_mirror"]:
            A("    s_nop 1")
            A("    v_add_f32_dpp v%d, v%d, v%d %s row_mask:0xf bank_mask:0xf" % (ACC, ACC, ACC, m))
        if mimic:
            A("    v_mul_f32 v%d, %s, v%d" % (ACC, f32hex(1.0 / 640), ACC))
            A("    v_cvt_pk_bf16_f32 v%d, v%d, v%d" % (ACC, ACC, ACC))
            A("    v_and_b32 v%d, s10, v%d" % (ACC, ACC))
            A("    v_add_f32 v%d, %s, v%d" % (ACC, f32hex(1e-6), ACC))
            A("    v_cvt_pk_bf16_f32 v%d, v%d, v%d" % (ACC, ACC, ACC))
            A("    v_and_b32 v%d, s10, v%d" % (ACC, ACC))
            A("    v_sqrt_f32 v%d, v%d" % (ACC, ACC))
            A("    s_nop 0")
            A("    v_cvt_pk_bf16_f32 v%d, v%d, v%d" % (ACC, ACC, ACC))
            A("    v_and_b32 v%d, s10, v%d" % (ACC, ACC))
            A("    v_rcp_f32 v%d, v%d" % (SC, ACC))
        else:
            A("    v_mov_b32 v%d, %s" % (ACC2, f32hex(1e-6)))
            A("    v_fmac_f32 v%d, %s, v%d" % (ACC2, f32hex(1.0 / 640), ACC))
            A("    v_rsq_f32 v%d, v%d" % (SC, ACC2))
        if not gdone:
            wait_for(("g", 4))
            ST(5)
            for k in range(20):
                A("    v_lshlrev_b32 v%d, 16, v%d" % (GU + 2 * k, GB + k))
                A("    v_and_b32 v%d, s10, v%d" % (GU + 2 * k + 1, GB + k))
            gdone = True
        else:
            A("    s_nop 0")
        for k in range(5):
            r = XB + 20 * gi + 4 * k
            for j in range(4):
                t = TM + 2 * j
                A("    v_lshlrev_b32 v%d, 16, v%d" % (t, r + j))
                A("    v_and_b32 v%d, s10, v%d" % (t + 1, r + j))
            for j in range(4):
                t = TM + 2 * j
                A("    v_pk_mul_f32 v[%d:%d], v[%d:%d], v[%d:%d] op_sel_hi:[1,0]" % (t, t + 1, t, t + 1, SC, SC + 1))
            if mimic:
                for j in range(4):
                    t = TM + 2 * j
                    A("    v_cvt_pk_bf16_f32 v%d, v%d, v%d" % (r + j, t, t + 1))
                for j in range(4):
                    t = TM + 2 * j
                    A("    v_lshlrev_b32 v%d, 16, v%d" % (t, r + j))
                    A("    v_and_b32 v%d, s10, v%d" % (t + 1, r + j))
            for j in range(4):
                t = TM + 2 * j
                g = GU + 2 * (4 * k + j)
                A("    v_pk_mul_f32 v[%d:%d], v[%d:%d], v[%d:%d]" % (t, t + 1, t, t + 1, g, g + 1))
            for j in range(4):
                t = TM + 2 * j
                A("    v_cvt_pk_bf16_f32 v%d, v%d, v%d" % (r + j, t, t + 1))
            A("    global_store_dwordx4 v%d, v[%d:%d], s[8:9] offset:%d %s" % (2 + gi, r, r + 3, 256 * k, stflag))
            stores_issued += 1
    if stamp:
        ST(6)
        A("    s_waitcnt vmcnt(0)")
        ST(7)
        A("    s_getreg_b32 s36, hwreg(HW_REG_XCC_ID)")
        A("    s_getreg_b32 s37, hwreg(HW_REG_HW_ID)")
        A("    s_waitcnt lgkmcnt(0)")
        A("    v_lshrrev_b32 v8, 6, v7")
        A("    s_mul_i32 s3, s2, %d" % waves)
        A("    v_add_u32 v8, s3, v8")
        A("    v_lshlrev_b32 v8, 6, v8")
        for i in range(8):
            A("    v_mov_b32 v%d, s%d" % (12 + i, 20 + 2 * i))
        A("    v_mov_b32 v20, s36")
        A("    v_mov_b32 v21, s37")
        A("    v_and_b32 v7, 63, v7")
        A("    v_cmp_eq_u32 vcc, 0, v7")
        A("    s_and_saveexec_b64 s[14:15], vcc")
        A("    global_store_dwordx4 v8, v[12:15], s[12:13]")
        A("    global_store_dwordx4 v8, v[16:19], s[12:13] offset:16")
        A("    global_store_dwordx2 v8, v[20:21], s[12:13] offset:32")
    if probe is not None:
        ST(6)
        A("    s_waitcnt vmcnt(0)")
        ST(7)
        A("    s_waitcnt lgkmcnt(0)")
        A("    s_not_b32 s40, s20")
        A("    v_mov_b32 v8, 0")
        A("    v_mov_b32 v9, s40")
        A("    v_cmp_eq_u32 vcc, 0, v7")
        A("    s_and_saveexec_b64 s[14:15], vcc")
        A("    s_cbranch_execz L_noat")
        A("    global_atomic_umax v8, v9, s[12:13] sc1")
        A("L_noat:")
        A("    s_mov_b64 exec, s[14:15]")
        A("    s_add_u32 s40, s20, 1500")
        A("L_spin1:")
        A("    s_sleep 4")
        A("    s_memrealtime s[42:43]")
        A("    s_waitcnt lgkmcnt(0)")
        A("    s_sub_u32 s44, s42, s40")
        A("    s_cmp_lt_i32 s44, 0")
        A("    s_cbranch_scc1 L_spin1")
        A("    global_load_dword v9, v8, s[12:13] sc0 sc1")
        A("    s_waitcnt vmcnt(0)")
        A("    v_readfirstlane_b32 s41, v9")
        A("    s_nop 3")
        A("    s_not_b32 s41, s41")
        if own:
            A("    s_sub_u32 s45, s%d, s20" % (20 + 2 * probe))
        else:
            A("    s_sub_u32 s45, s%d, s41" % (20 + 2 * probe))
        A("    s_max_i32 s45, s45, 0")
        A("    s_min_u32 s45, s45, 1000")
        A("    s_mul_i32 s45, s45, %d" % amp)
        A("    s_sub_u32 s46, s20, s41")
        A("    s_max_i32 s46, s46, 0")
        A("    s_min_u32 s46, s46, 1000")
        A("    s_sub_u32 s40, s20, s46")
        A("    s_add_u32 s40, s40, s45")
        A("    s_add_u32 s40, s40, 2000")
        A("L_spin2:")
        A("    s_sleep 1")
        A("    s_memrealtime s[42:43]")
        A("    s_waitcnt lgkmcnt(0)")
        A("    s_sub_u32 s44, s42, s40")
        A("    s_cmp_lt_i32 s44, 0")
        A("    s_cbranch_scc1 L_spin2")
    if spin:
        A("    s_waitcnt vmcnt(0) lgkmcnt(0)")
        A("    s_add_u32 s40, s40, %d" % spin)
        A("L_spin:")
        A("    s_memrealtime s[42:43]")
        A("    s_waitcnt lgkmcnt(0)")
        A("    s_sub_u32 s44, s42, s40")
        A("    s_cmp_lt_i32 s44, 0")
        A("    s_cbranch_scc1 L_spin")
    A("L_end:")
    A("    s_endpgm")
    nv = TM + 8
    A('.section .rodata,"a"')
    A(".p2align 6")
    A(".amdhsa_kernel %s_kernel" % NAME)
    A("  .amdhsa_next_free_vgpr %d" % nv)
    A("  .amdhsa_next_free_sgpr %d" % (48 if (stamp or spin or probe is not None) else 16))
    A("  .amdhsa_accum_offset %d" % ((nv + 3) // 4 * 4))
    A("  .amdhsa_group_segment_fixed_size 0")
    A("  .amdhsa_kernarg_size 40")
    A("  .amdhsa_user_sgpr_count 2")
    A("  .amdhsa_user_sgpr_kernarg_segment_ptr 1")
    A("  .amdhsa_system_sgpr_workgroup_id_x 1")
    A("  .amdhsa_float_denorm_mode_32 3")
    A(".end_amdhsa_kernel")
    return "\n".join(L) + "\n"

if __name__ == "__main__":
    import json
    out = sys.argv[1]
    kw = json.loads(sys.argv[2]) if len(sys.argv) > 2 else {}
    open(out, "w").write(gen(**kw))
```

```python
import sys, struct

NAME = "standalone__rmsnorm__sampling"
ROWS = 8192
ROWB = 1280

HEADER = """; Kernarg layout for this problem (40 bytes, ptrs only, base s[0:1]):
"""

def f32hex(x):
    return "0x%08x" % struct.unpack("<I", struct.pack("<f", x))[0]

def gen(waves=4, groups=1, ldflag="", stflag="", gflag="", mimic=True, gfirst=False, stamp=False, spin=0, probe=None, amp=10, own=False, pretouch=False, st5="g", nops=0):
    threads = waves * 64
    rows_per_wg = waves * 4 * groups
    nwg = ROWS // rows_per_wg
    L = []
    A = L.append
    A(HEADER + "; @launch grid=(%d,1,1) block=(%d,1,1) lds=0" % (nwg, threads))
    A('.amdgcn_target "amdgcn-amd-amdhsa--gfx950"')
    A(".text")
    A(".globl %s_kernel" % NAME)
    A(".p2align 8")
    A(".type %s_kernel,@function" % NAME)
    A("%s_kernel:" % NAME)
    def ST(i):
        if stamp or (probe is not None and i in (0, probe)): A("    s_memrealtime s[%d:%d]" % (20 + 2 * i, 21 + 2 * i))
    ST(0)
    if spin: A("    s_memrealtime s[40:41]")
    if probe is not None:
        A("    s_load_dwordx2 s[12:13], s[0:1], 24")
        A("    v_mov_b32 v7, v0")
    if stamp:
        A("    s_load_dwordx2 s[12:13], s[0:1], 32")
        A("    v_mov_b32 v7, v0")
    A("    s_load_dwordx4 s[4:7], s[0:1], 0")
    A("    s_load_dwordx2 s[8:9], s[0:1], 16")
    A("    s_cmp_ge_u32 s2, %d" % nwg)
    A("    s_cbranch_scc1 L_end")
    A("    v_and_b32 v1, 15, v0")
    A("    v_lshlrev_b32 v1, 4, v1")
    A("    v_lshrrev_b32 v2, 4, v0")
    if groups > 1:
        A("    v_lshrrev_b32 v3, 6, v0")
        A("    v_and_b32 v2, 3, v2")
        A("    v_mad_u32_u24 v2, v3, %d, v2" % (4 * groups))
    A("    s_mul_i32 s3, s2, %d" % (rows_per_wg * ROWB))
    A("    v_mul_u32_u24 v2, %d, v2" % ROWB)
    A("    v_add3_u32 v2, v2, v1, s3")
    if groups > 1:
        for gi in range(1, groups):
            A("    v_add_u32 v%d, %d, v2" % (2 + gi, gi * 4 * ROWB))
    A("    s_mov_b32 s10, 0xffff0000")
    XB = 8
    GB = XB + 20 * groups
    GU = GB + 20
    T = GU + 40
    for i in range(nops): A("    s_nop 0")
    A("    s_waitcnt lgkmcnt(0)")
    ST(1)
    def loadg():
        for k in range(5):
            A("    global_load_dwordx4 v[%d:%d], v1, s[6:7] offset:%d %s" % (GB + 4 * k, GB + 4 * k + 3, 256 * k, gflag))
    if pretouch:
        A("    global_load_dword v6, v2, s[8:9]")
    if gfirst: loadg()
    for gi in range(groups):
        for k in range(5):
            r = XB + 20 * gi + 4 * k
            A("    global_load_dwordx4 v[%d:%d], v%d, s[4:5] offset:%d %s" % (r, r + 3, 2 + gi, 256 * k, ldflag))
        if gi == 0 and not gfirst: loadg()
    ST(2)
    total = 5 * groups + 5
    order = []
    if gfirst: order += [("g", k) for k in range(5)]
    for gi in range(groups):
        order += [("x", gi, k) for k in range(5)]
        if gi == 0 and not gfirst: order += [("g", k) for k in range(5)]
    stores_issued = 0
    def wait_for(item):
        idx = order.index(item)
        n = total - (idx + 1) + stores_issued
        A("    s_waitcnt vmcnt(%d)" % n)
    ACC = T; ACC2 = T + 1; SC = T + 2
    assert SC % 2 == 0
    TM = T + 4
    gdone = False
    for gi in range(groups):
        if gfirst and not gdone:
            wait_for(("g", 4))
            for k in range(20):
                A("    v_lshlrev_b32 v%d, 16, v%d" % (GU + 2 * k, GB + k))
                A("    v_and_b32 v%d, s10, v%d" % (GU + 2 * k + 1, GB + k))
            gdone = True
        A("    v_mov_b32 v%d, 0" % ACC)
        A("    v_mov_b32 v%d, 0" % ACC2)
        for k in range(5):
            wait_for(("x", gi, k))
            if gi == 0 and k == 0: ST(3)
            if gi == groups - 1 and k == 4: ST(4)
            r = XB + 20 * gi + 4 * k
            for j in range(4):
                a = ACC if j % 2 == 0 else ACC2
                A("    v_dot2c_f32_bf16 v%d, v%d, v%d" % (a, r + j, r + j))
        A("    s_nop 2")
        A("    v_add_f32 v%d, v%d, v%d" % (ACC, ACC, ACC2))
        for m in ["quad_perm:[1,0,3,2]", "quad_perm:[2,3,0,1]", "row_half_mirror", "row_mirror"]:
            A("    s_nop 1")
            A("    v_add_f32_dpp v%d, v%d, v%d %s row_mask:0xf bank_mask:0xf" % (ACC, ACC, ACC, m))
        if mimic:
            A("    v_mul_f32 v%d, %s, v%d" % (ACC, f32hex(1.0 / 640), ACC))
            A("    v_cvt_pk_bf16_f32 v%d, v%d, v%d" % (ACC, ACC, ACC))
            A("    v_and_b32 v%d, s10, v%d" % (ACC, ACC))
            A("    v_add_f32 v%d, %s, v%d" % (ACC, f32hex(1e-6), ACC))
            A("    v_cvt_pk_bf16_f32 v%d, v%d, v%d" % (ACC, ACC, ACC))
            A("    v_and_b32 v%d, s10, v%d" % (ACC, ACC))
            A("    v_sqrt_f32 v%d, v%d" % (ACC, ACC))
            A("    s_nop 0")
            A("    v_cvt_pk_bf16_f32 v%d, v%d, v%d" % (ACC, ACC, ACC))
            A("    v_and_b32 v%d, s10, v%d" % (ACC, ACC))
            A("    v_rcp_f32 v%d, v%d" % (SC, ACC))
        else:
            A("    v_mov_b32 v%d, %s" % (ACC2, f32hex(1e-6)))
            A("    v_fmac_f32 v%d, %s, v%d" % (ACC2, f32hex(1.0 / 640), ACC))
            A("    v_rsq_f32 v%d, v%d" % (SC, ACC2))
        if not gdone:
            wait_for(("g", 4))
            if st5 == "g": ST(5)
            for k in range(20):
                A("    v_lshlrev_b32 v%d, 16, v%d" % (GU + 2 * k, GB + k))
                A("    v_and_b32 v%d, s10, v%d" % (GU + 2 * k + 1, GB + k))
            gdone = True
        else:
            A("    s_nop 0")
        for k in range(5):
            r = XB + 20 * gi + 4 * k
            for j in range(4):
                t = TM + 2 * j
                A("    v_lshlrev_b32 v%d, 16, v%d" % (t, r + j))
                A("    v_and_b32 v%d, s10, v%d" % (t + 1, r + j))
            for j in range(4):
                t = TM + 2 * j
                A("    v_pk_mul_f32 v[%d:%d], v[%d:%d], v[%d:%d] op_sel_hi:[1,0]" % (t, t + 1, t, t + 1, SC, SC + 1))
            if mimic:
                for j in range(4):
                    t = TM + 2 * j
                    A("    v_cvt_pk_bf16_f32 v%d, v%d, v%d" % (r + j, t, t + 1))
                for j in range(4):
                    t = TM + 2 * j
                    A("    v_lshlrev_b32 v%d, 16, v%d" % (t, r + j))
                    A("    v_and_b32 v%d, s10, v%d" % (t + 1, r + j))
            for j in range(4):
                t = TM + 2 * j
                g = GU + 2 * (4 * k + j)
                A("    v_pk_mul_f32 v[%d:%d], v[%d:%d], v[%d:%d]" % (t, t + 1, t, t + 1, g, g + 1))
            for j in range(4):
                t = TM + 2 * j
                A("    v_cvt_pk_bf16_f32 v%d, v%d, v%d" % (r + j, t, t + 1))
            if st5 == "pre" and gi == 0 and k == 0: ST(5)
            A("    global_store_dwordx4 v%d, v[%d:%d], s[8:9] offset:%d %s" % (2 + gi, r, r + 3, 256 * k, stflag))
            if st5 == "post" and gi == 0 and k == 0: ST(5)
            if st5 == "post2" and gi == 0 and k == 2: ST(5)
            stores_issued += 1
    if stamp:
        ST(6)
        A("    s_waitcnt vmcnt(0)")
        ST(7)
        A("    s_getreg_b32 s36, hwreg(HW_REG_XCC_ID)")
        A("    s_getreg_b32 s37, hwreg(HW_REG_HW_ID)")
        A("    s_waitcnt lgkmcnt(0)")
        A("    v_lshrrev_b32 v8, 6, v7")
        A("    s_mul_i32 s3, s2, %d" % waves)
        A("    v_add_u32 v8, s3, v8")
        A("    v_lshlrev_b32 v8, 6, v8")
        for i in range(8):
            A("    v_mov_b32 v%d, s%d" % (12 + i, 20 + 2 * i))
        A("    v_mov_b32 v20, s36")
        A("    v_mov_b32 v21, s37")
        A("    v_and_b32 v7, 63, v7")
        A("    v_cmp_eq_u32 vcc, 0, v7")
        A("    s_and_saveexec_b64 s[14:15], vcc")
        A("    global_store_dwordx4 v8, v[12:15], s[12:13]")
        A("    global_store_dwordx4 v8, v[16:19], s[12:13] offset:16")
        A("    global_store_dwordx2 v8, v[20:21], s[12:13] offset:32")
    if probe is not None:
        ST(6)
        A("    s_waitcnt vmcnt(0)")
        ST(7)
        A("    s_waitcnt lgkmcnt(0)")
        A("    s_not_b32 s40, s20")
        A("    v_mov_b32 v8, 0")
        A("    v_mov_b32 v9, s40")
        A("    v_cmp_eq_u32 vcc, 0, v7")
        A("    s_and_saveexec_b64 s[14:15], vcc")
        A("    s_cbranch_execz L_noat")
        A("    global_atomic_umax v8, v9, s[12:13] sc1")
        A("L_noat:")
        A("    s_mov_b64 exec, s[14:15]")
        A("    s_add_u32 s40, s20, 1500")
        A("L_spin1:")
        A("    s_sleep 4")
        A("    s_memrealtime s[42:43]")
        A("    s_waitcnt lgkmcnt(0)")
        A("    s_sub_u32 s44, s42, s40")
        A("    s_cmp_lt_i32 s44, 0")
        A("    s_cbranch_scc1 L_spin1")
        A("    global_load_dword v9, v8, s[12:13] sc0 sc1")
        A("    s_waitcnt vmcnt(0)")
        A("    v_readfirstlane_b32 s41, v9")
        A("    s_nop 3")
        A("    s_not_b32 s41, s41")
        if own:
            A("    s_sub_u32 s45, s%d, s20" % (20 + 2 * probe))
        else:
            A("    s_sub_u32 s45, s%d, s41" % (20 + 2 * probe))
        A("    s_max_i32 s45, s45, 0")
        A("    s_min_u32 s45, s45, 1000")
        A("    s_mul_i32 s45, s45, %d" % amp)
        A("    s_sub_u32 s46, s20, s41")
        A("    s_max_i32 s46, s46, 0")
        A("    s_min_u32 s46, s46, 1000")
        A("    s_sub_u32 s40, s20, s46")
        A("    s_add_u32 s40, s40, s45")
        A("    s_add_u32 s40, s40, 2000")
        A("L_spin2:")
        A("    s_sleep 1")
        A("    s_memrealtime s[42:43]")
        A("    s_waitcnt lgkmcnt(0)")
        A("    s_sub_u32 s44, s42, s40")
        A("    s_cmp_lt_i32 s44, 0")
        A("    s_cbranch_scc1 L_spin2")
    if spin:
        A("    s_waitcnt vmcnt(0) lgkmcnt(0)")
        A("    s_add_u32 s40, s40, %d" % spin)
        A("L_spin:")
        A("    s_memrealtime s[42:43]")
        A("    s_waitcnt lgkmcnt(0)")
        A("    s_sub_u32 s44, s42, s40")
        A("    s_cmp_lt_i32 s44, 0")
        A("    s_cbranch_scc1 L_spin")
    A("L_end:")
    A("    s_endpgm")
    nv = TM + 8
    A('.section .rodata,"a"')
    A(".p2align 6")
    A(".amdhsa_kernel %s_kernel" % NAME)
    A("  .amdhsa_next_free_vgpr %d" % nv)
    A("  .amdhsa_next_free_sgpr %d" % (48 if (stamp or spin or probe is not None) else 16))
    A("  .amdhsa_accum_offset %d" % ((nv + 3) // 4 * 4))
    A("  .amdhsa_group_segment_fixed_size 0")
    A("  .amdhsa_kernarg_size 40")
    A("  .amdhsa_user_sgpr_count 2")
    A("  .amdhsa_user_sgpr_kernarg_segment_ptr 1")
    A("  .amdhsa_system_sgpr_workgroup_id_x 1")
    A("  .amdhsa_float_denorm_mode_32 3")
    A(".end_amdhsa_kernel")
    return "\n".join(L) + "\n"

if __name__ == "__main__":
    import json
    out = sys.argv[1]
    kw = json.loads(sys.argv[2]) if len(sys.argv) > 2 else {}
    open(out, "w").write(gen(**kw))
```

```python
import sys, struct, json

NAME = "standalone__rmsnorm__sampling"
ROWS = 8192
ROWB = 1280
HEADER = """; Kernarg layout for this problem (40 bytes, ptrs only, base s[0:1]):
"""
FL = {"S": "", "T": "sc0 sc1", "N": "nt", "U": "sc0 sc1 nt", "V": "sc1", "W": "sc1 nt", "X": "sc0 nt"}

def f32hex(x):
    return "0x%08x" % struct.unpack("<I", struct.pack("<f", x))[0]

def gen(waves=8, st="N", ldflag="", fence="dummy", fence_at=0, gmode="w0", stamp=False, prio=False, dot=False):
    threads = waves * 64
    rows_per_wg = waves * 4
    nwg = ROWS // rows_per_wg
    lds = 2560 if gmode == "w0" else 0
    L = []
    A = L.append
    A(HEADER + "; @launch grid=(%d,1,1) block=(%d,1,1) lds=%d" % (nwg, threads, lds))
    A('.amdgcn_target "amdgcn-amd-amdhsa--gfx950"')
    A(".text")
    A(".globl %s_kernel" % NAME)
    A(".p2align 8")
    A(".type %s_kernel,@function" % NAME)
    A("%s_kernel:" % NAME)
    def ST(i):
        if stamp: A("    s_memrealtime s[%d:%d]" % (20 + 2 * i, 21 + 2 * i))
    ST(0)
    if stamp: A("    s_load_dwordx2 s[16:17], s[0:1], 32")
    A("    s_load_dwordx8 s[4:11], s[0:1], 0          ; s[4:5]=x s[6:7]=g s[8:9]=out")
    A("    s_cmp_ge_u32 s2, %d" % nwg)
    A("    s_cbranch_scc1 L_end")
    VC, VA, VG, VG2, VW2, VD = 1, 2, 3, 4, 5, 6
    ACC, ACC2, SC = 8, 9, 10
    XB = 12
    GU = 32
    P = 72
    nv = 112
    A("    v_readfirstlane_b32 s13, v0")
    A("    v_and_b32 v%d, 15, v0" % VC)
    A("    v_lshlrev_b32 v%d, 4, v%d" % (VC, VC))
    A("    v_lshrrev_b32 v%d, 4, v0" % VA)
    A("    s_mul_i32 s3, s2, %d" % (rows_per_wg * ROWB))
    A("    v_mul_u32_u24 v%d, %d, v%d" % (VA, ROWB, VA))
    A("    v_add3_u32 v%d, v%d, v%d, s3" % (VA, VA, VC))
    A("    s_mov_b32 s12, 0xffff0000")
    A("    v_mov_b32 v%d, 0" % ACC)
    A("    v_mov_b32 v%d, 0" % ACC2)
    if stamp: A("    v_mov_b32 v%d, v0" % nv)
    Q = []
    def wait_for(item):
        idx = Q.index(item)
        A("    s_waitcnt vmcnt(%d)" % (len(Q) - idx - 1))
    def loads():
        for k in range(5):
            r = XB + 4 * k
            A("    global_load_dwordx4 v[%d:%d], v%d, s[4:5] offset:%d %s" % (r, r + 3, VA, 256 * k, ldflag))
    def lo(d, s):
        return ("    v_and_b32 v%d, 0xffff, v%d" if dot else "    v_lshlrev_b32 v%d, 16, v%d") % (d, s)
    if gmode == "w0":
        A("    s_cmp_lg_u32 s13, 0")
        A("    s_cbranch_scc1 L_other")
        if prio: A("    s_setprio 3")
        A("    v_lshlrev_b32 v%d, 4, v0" % VG)
        A("    v_lshlrev_b32 v%d, 2, v0" % VG2)
        A("    v_and_b32 v%d, 0xf0, v%d" % (VW2, VG2))
        A("    v_and_b32 v%d, 1, v0" % VD)
        A("    v_lshl_add_u32 v%d, v%d, 3, v%d" % (VW2, VD, VW2))
        A("    v_bfe_u32 v%d, v0, 1, 1" % VD)
        A("    v_mul_u32_u24 v%d, 1280, v%d" % (VD, VD))
        A("    v_add_u32 v%d, v%d, v%d" % (VW2, VD, VW2))
        A("    s_waitcnt lgkmcnt(0)")
        ST(1)
        A("    global_load_dwordx4 v[%d:%d], v%d, s[6:7]" % (P, P + 3, VG))
        A("    global_load_dword v%d, v%d, s[6:7] offset:1024" % (P + 4, VG2))
        loads()
        ST(2)
        A("    s_waitcnt vmcnt(5)")
        for j in range(5):
            A(lo(GU + 2 * j, P + j))
            A("    v_and_b32 v%d, s12, v%d" % (GU + 2 * j + 1, P + j))
        A("    ds_write_b128 v%d, v[%d:%d]" % (VG, GU, GU + 3))
        A("    ds_write_b128 v%d, v[%d:%d] offset:1280" % (VG, GU + 4, GU + 7))
        A("    ds_write_b64 v%d, v[%d:%d] offset:1024" % (VW2, GU + 8, GU + 9))
        if prio: A("    s_setprio 0")
        A("    s_waitcnt lgkmcnt(0)")
        A("    s_branch L_join")
        A("L_other:")
        A("    s_waitcnt lgkmcnt(0)")
        ST(1)
        loads()
        ST(2)
        A("L_join:")
        for k in range(5): Q.append(("x", k))
        A("    s_barrier")
        for k in range(5):
            for h in range(2):
                r = GU + 8 * k + 4 * h
                A("    ds_read_b128 v[%d:%d], v%d offset:%d" % (r, r + 3, VC, 1280 * h + 256 * k))
    else:
        A("    s_waitcnt lgkmcnt(0)")
        ST(1)
        for k in range(5):
            r = P + 20 + 4 * k
            A("    global_load_dwordx4 v[%d:%d], v%d, s[6:7] offset:%d" % (r, r + 3, VC, 256 * k))
        loads()
        for k in range(5): Q.append(("x", k))
        ST(2)
        A("    s_waitcnt vmcnt(5)")
        for j in range(20):
            A(lo(GU + 2 * j, P + 20 + j))
            A("    v_and_b32 v%d, s12, v%d" % (GU + 2 * j + 1, P + 20 + j))
    if fence == "role":
        A("    s_cmp_lt_u32 s13, %d" % (threads // 2))
        A("    s_cbranch_scc1 L_old1")
        A("    s_waitcnt vmcnt(%d)" % (4 - fence_at))
        A("    s_barrier")
        A("L_old1:")
    def prework(k):
        out = []
        r = XB + 4 * k
        if dot:
            if gmode == "w0": out.append("    s_waitcnt lgkmcnt(%d)" % (8 - 2 * k))
            for j in range(4):
                p = P + 8 * k + 2 * j
                g = GU + 8 * k + 2 * j
                out.append("    v_dot2_f32_bf16 v%d, v%d, v%d, 0" % (p, r + j, g))
                out.append("    v_dot2_f32_bf16 v%d, v%d, v%d, 0" % (p + 1, r + j, g + 1))
            return out
        for j in range(4):
            p = P + 8 * k + 2 * j
            out.append("    v_lshlrev_b32 v%d, 16, v%d" % (p, r + j))
            out.append("    v_and_b32 v%d, s12, v%d" % (p + 1, r + j))
        if gmode == "w0": out.append("    s_waitcnt lgkmcnt(%d)" % (8 - 2 * k))
        for j in range(4):
            p = P + 8 * k + 2 * j
            g = GU + 8 * k + 2 * j
            out.append("    v_pk_mul_f32 v[%d:%d], v[%d:%d], v[%d:%d]" % (p, p + 1, p, p + 1, g, g + 1))
        return out
    for k in range(5):
        wait_for(("x", k))
        if k == 0: ST(3)
        if k == 4: ST(4)
        if fence == "dummy" and k == fence_at:
            A("    global_load_dword v%d, v%d, s[6:7]" % (VD, VC))
            Q.append("d")
        r = XB + 4 * k
        for j in range(4):
            a = ACC if j % 2 == 0 else ACC2
            A("    v_dot2c_f32_bf16 v%d, v%d, v%d" % (a, r + j, r + j))
        if k < 4: L.extend(prework(k))
    pw = prework(4)
    def fill(n):
        for _ in range(n):
            A(pw.pop(0) if pw else "    s_nop 0")
    fill(3)
    A("    v_add_f32 v%d, v%d, v%d" % (ACC, ACC, ACC2))
    ms = ["quad_perm:[1,0,3,2]", "quad_perm:[2,3,0,1]", "row_half_mirror", "row_mirror"]
    for i, m in enumerate(ms):
        if i == 0:
            A("    v_mov_b32 v%d, %s" % (ACC2, f32hex(1e-6)))
            fill(1)
        else:
            fill(2)
        A("    v_add_f32_dpp v%d, v%d, v%d %s row_mask:0xf bank_mask:0xf" % (ACC, ACC, ACC, m))
    A("    v_fmac_f32 v%d, %s, v%d" % (ACC2, f32hex(1.0 / 640), ACC))
    A("    v_rsq_f32 v%d, v%d" % (SC, ACC2))
    fill(max(1, len(pw)))
    def fin(k):
        r = XB + 4 * k
        for j in range(4):
            p = P + 8 * k + 2 * j
            A("    v_pk_mul_f32 v[%d:%d], v[%d:%d], v[%d:%d] op_sel_hi:[1,0]" % (p, p + 1, p, p + 1, SC, SC + 1))
        for j in range(4):
            p = P + 8 * k + 2 * j
            A("    v_cvt_pk_bf16_f32 v%d, v%d, v%d" % (r + j, p, p + 1))
    def store(k):
        r = XB + 4 * k
        A("    global_store_dwordx4 v%d, v[%d:%d], s[8:9] offset:%d %s" % (VA, r, r + 3, 256 * k, FL[st]))
    if fence == "none":
        ST(5)
        for k in range(5):
            fin(k); store(k)
    else:
        for k in range(5): fin(k)
        if fence == "dummy": A("    s_waitcnt vmcnt(0)")
        elif fence == "barrier": A("    s_barrier")
        elif fence == "role":
            A("    s_cbranch_scc0 L_young2")
            A("    s_barrier")
            A("L_young2:")
        ST(5)
        for k in range(5): store(k)
    if stamp:
        ST(6)
        A("    s_waitcnt vmcnt(0)")
        ST(7)
        A("    s_getreg_b32 s36, hwreg(HW_REG_XCC_ID)")
        A("    s_getreg_b32 s37, hwreg(HW_REG_HW_ID)")
        A("    s_waitcnt lgkmcnt(0)")
        A("    v_lshrrev_b32 v8, 6, v%d" % nv)
        A("    s_mul_i32 s3, s2, %d" % waves)
        A("    v_add_u32 v8, s3, v8")
        A("    v_lshlrev_b32 v8, 6, v8")
        for i in range(8):
            A("    v_mov_b32 v%d, s%d" % (12 + i, 20 + 2 * i))
        A("    v_mov_b32 v20, s36")
        A("    v_mov_b32 v21, s37")
        A("    v_and_b32 v7, 63, v%d" % nv)
        A("    v_cmp_eq_u32 vcc, 0, v7")
        A("    s_and_saveexec_b64 s[14:15], vcc")
        A("    global_store_dwordx4 v8, v[12:15], s[16:17]")
        A("    global_store_dwordx4 v8, v[16:19], s[16:17] offset:16")
        A("    global_store_dwordx2 v8, v[20:21], s[16:17] offset:32")
        nv += 1
    A("L_end:")
    A("    s_endpgm")
    A('.section .rodata,"a"')
    A(".p2align 6")
    A(".amdhsa_kernel %s_kernel" % NAME)
    A("  .amdhsa_next_free_vgpr %d" % nv)
    A("  .amdhsa_next_free_sgpr %d" % (48 if stamp else 16))
    A("  .amdhsa_accum_offset %d" % ((nv + 3) // 4 * 4))
    A("  .amdhsa_group_segment_fixed_size 0")
    A("  .amdhsa_kernarg_size 40")
    A("  .amdhsa_user_sgpr_count 2")
    A("  .amdhsa_user_sgpr_kernarg_segment_ptr 1")
    A("  .amdhsa_system_sgpr_workgroup_id_x 1")
    A("  .amdhsa_float_denorm_mode_32 3")
    A(".end_amdhsa_kernel")
    return "\n".join(L) + "\n"

if __name__ == "__main__":
    out = sys.argv[1]
    kw = json.loads(sys.argv[2]) if len(sys.argv) > 2 else {}
    open(out, "w").write(gen(**kw))
```

```python
import sys, struct

NAME = "standalone__rmsnorm__sampling"
ROWS = 8192
ROWB = 1280

HEADER = """; Kernarg layout for this problem (40 bytes, ptrs only, base s[0:1]):
"""

def f32hex(x):
    return "0x%08x" % struct.unpack("<I", struct.pack("<f", x))[0]

def gen(waves=4, groups=1, ldflag="", stflag="", gflag="", mimic=True, gfirst=False, stamp=False, spin=0, probe=None, amp=10, own=False, pretouch=False, st5="g", nops=0, jumps=0, jgap=2048):
    threads = waves * 64
    rows_per_wg = waves * 4 * groups
    nwg = ROWS // rows_per_wg
    L = []
    A = L.append
    A(HEADER + "; @launch grid=(%d,1,1) block=(%d,1,1) lds=0" % (nwg, threads))
    A('.amdgcn_target "amdgcn-amd-amdhsa--gfx950"')
    A(".text")
    A(".globl %s_kernel" % NAME)
    A(".p2align 8")
    A(".type %s_kernel,@function" % NAME)
    A("%s_kernel:" % NAME)
    def ST(i):
        if stamp or (probe is not None and i in (0, probe)): A("    s_memrealtime s[%d:%d]" % (20 + 2 * i, 21 + 2 * i))
    ST(0)
    if spin: A("    s_memrealtime s[40:41]")
    if probe is not None:
        A("    s_load_dwordx2 s[12:13], s[0:1], 24")
        A("    v_mov_b32 v7, v0")
    if stamp:
        A("    s_load_dwordx2 s[12:13], s[0:1], 32")
        A("    v_mov_b32 v7, v0")
    A("    s_load_dwordx4 s[4:7], s[0:1], 0")
    A("    s_load_dwordx2 s[8:9], s[0:1], 16")
    A("    s_cmp_ge_u32 s2, %d" % nwg)
    A("    s_cbranch_scc1 L_end")
    A("    v_and_b32 v1, 15, v0")
    A("    v_lshlrev_b32 v1, 4, v1")
    A("    v_lshrrev_b32 v2, 4, v0")
    if groups > 1:
        A("    v_lshrrev_b32 v3, 6, v0")
        A("    v_and_b32 v2, 3, v2")
        A("    v_mad_u32_u24 v2, v3, %d, v2" % (4 * groups))
    A("    s_mul_i32 s3, s2, %d" % (rows_per_wg * ROWB))
    A("    v_mul_u32_u24 v2, %d, v2" % ROWB)
    A("    v_add3_u32 v2, v2, v1, s3")
    if groups > 1:
        for gi in range(1, groups):
            A("    v_add_u32 v%d, %d, v2" % (2 + gi, gi * 4 * ROWB))
    A("    s_mov_b32 s10, 0xffff0000")
    XB = 8
    GB = XB + 20 * groups
    GU = GB + 20
    T = GU + 40
    for i in range(nops): A("    s_nop 0")
    for i in range(jumps):
        A("    s_branch L_jmp%d" % i)
        for q in range(jgap // 4 - 1): A("    s_nop 0")
        A("L_jmp%d:" % i)
    A("    s_waitcnt lgkmcnt(0)")
    ST(1)
    def loadg():
        for k in range(5):
            A("    global_load_dwordx4 v[%d:%d], v1, s[6:7] offset:%d %s" % (GB + 4 * k, GB + 4 * k + 3, 256 * k, gflag))
    if pretouch:
        A("    global_load_dword v6, v2, s[8:9]")
    if gfirst: loadg()
    for gi in range(groups):
        for k in range(5):
            r = XB + 20 * gi + 4 * k
            A("    global_load_dwordx4 v[%d:%d], v%d, s[4:5] offset:%d %s" % (r, r + 3, 2 + gi, 256 * k, ldflag))
        if gi == 0 and not gfirst: loadg()
    ST(2)
    total = 5 * groups + 5
    order = []
    if gfirst: order += [("g", k) for k in range(5)]
    for gi in range(groups):
        order += [("x", gi, k) for k in range(5)]
        if gi == 0 and not gfirst: order += [("g", k) for k in range(5)]
    stores_issued = 0
    def wait_for(item):
        idx = order.index(item)
        n = total - (idx + 1) + stores_issued
        A("    s_waitcnt vmcnt(%d)" % n)
    ACC = T; ACC2 = T + 1; SC = T + 2
    assert SC % 2 == 0
    TM = T + 4
    gdone = False
    for gi in range(groups):
        if gfirst and not gdone:
            wait_for(("g", 4))
            for k in range(20):
                A("    v_lshlrev_b32 v%d, 16, v%d" % (GU + 2 * k, GB + k))
                A("    v_and_b32 v%d, s10, v%d" % (GU + 2 * k + 1, GB + k))
            gdone = True
        A("    v_mov_b32 v%d, 0" % ACC)
        A("    v_mov_b32 v%d, 0" % ACC2)
        for k in range(5):
            wait_for(("x", gi, k))
            if gi == 0 and k == 0: ST(3)
            if gi == groups - 1 and k == 4: ST(4)
            r = XB + 20 * gi + 4 * k
            for j in range(4):
                a = ACC if j % 2 == 0 else ACC2
                A("    v_dot2c_f32_bf16 v%d, v%d, v%d" % (a, r + j, r + j))
        A("    s_nop 2")
        A("    v_add_f32 v%d, v%d, v%d" % (ACC, ACC, ACC2))
        for m in ["quad_perm:[1,0,3,2]", "quad_perm:[2,3,0,1]", "row_half_mirror", "row_mirror"]:
            A("    s_nop 1")
            A("    v_add_f32_dpp v%d, v%d, v%d %s row_mask:0xf bank_mask:0xf" % (ACC, ACC, ACC, m))
        if mimic:
            A("    v_mul_f32 v%d, %s, v%d" % (ACC, f32hex(1.0 / 640), ACC))
            A("    v_cvt_pk_bf16_f32 v%d, v%d, v%d" % (ACC, ACC, ACC))
            A("    v_and_b32 v%d, s10, v%d" % (ACC, ACC))
            A("    v_add_f32 v%d, %s, v%d" % (ACC, f32hex(1e-6), ACC))
            A("    v_cvt_pk_bf16_f32 v%d, v%d, v%d" % (ACC, ACC, ACC))
            A("    v_and_b32 v%d, s10, v%d" % (ACC, ACC))
            A("    v_sqrt_f32 v%d, v%d" % (ACC, ACC))
            A("    s_nop 0")
            A("    v_cvt_pk_bf16_f32 v%d, v%d, v%d" % (ACC, ACC, ACC))
            A("    v_and_b32 v%d, s10, v%d" % (ACC, ACC))
            A("    v_rcp_f32 v%d, v%d" % (SC, ACC))
        else:
            A("    v_mov_b32 v%d, %s" % (ACC2, f32hex(1e-6)))
            A("    v_fmac_f32 v%d, %s, v%d" % (ACC2, f32hex(1.0 / 640), ACC))
            A("    v_rsq_f32 v%d, v%d" % (SC, ACC2))
        if not gdone:
            wait_for(("g", 4))
            if st5 == "g": ST(5)
            for k in range(20):
                A("    v_lshlrev_b32 v%d, 16, v%d" % (GU + 2 * k, GB + k))
                A("    v_and_b32 v%d, s10, v%d" % (GU + 2 * k + 1, GB + k))
            gdone = True
        else:
            A("    s_nop 0")
        for k in range(5):
            r = XB + 20 * gi + 4 * k
            for j in range(4):
                t = TM + 2 * j
                A("    v_lshlrev_b32 v%d, 16, v%d" % (t, r + j))
                A("    v_and_b32 v%d, s10, v%d" % (t + 1, r + j))
            for j in range(4):
                t = TM + 2 * j
                A("    v_pk_mul_f32 v[%d:%d], v[%d:%d], v[%d:%d] op_sel_hi:[1,0]" % (t, t + 1, t, t + 1, SC, SC + 1))
            if mimic:
                for j in range(4):
                    t = TM + 2 * j
                    A("    v_cvt_pk_bf16_f32 v%d, v%d, v%d" % (r + j, t, t + 1))
                for j in range(4):
                    t = TM + 2 * j
                    A("    v_lshlrev_b32 v%d, 16, v%d" % (t, r + j))
                    A("    v_and_b32 v%d, s10, v%d" % (t + 1, r + j))
            for j in range(4):
                t = TM + 2 * j
                g = GU + 2 * (4 * k + j)
                A("    v_pk_mul_f32 v[%d:%d], v[%d:%d], v[%d:%d]" % (t, t + 1, t, t + 1, g, g + 1))
            for j in range(4):
                t = TM + 2 * j
                A("    v_cvt_pk_bf16_f32 v%d, v%d, v%d" % (r + j, t, t + 1))
            if st5 == "pre" and gi == 0 and k == 0: ST(5)
            A("    global_store_dwordx4 v%d, v[%d:%d], s[8:9] offset:%d %s" % (2 + gi, r, r + 3, 256 * k, stflag))
            if st5 == "post" and gi == 0 and k == 0: ST(5)
            if st5 == "post2" and gi == 0 and k == 2: ST(5)
            stores_issued += 1
    if stamp:
        ST(6)
        A("    s_waitcnt vmcnt(0)")
        ST(7)
        A("    s_getreg_b32 s36, hwreg(HW_REG_XCC_ID)")
        A("    s_getreg_b32 s37, hwreg(HW_REG_HW_ID)")
        A("    s_waitcnt lgkmcnt(0)")
        A("    v_lshrrev_b32 v8, 6, v7")
        A("    s_mul_i32 s3, s2, %d" % waves)
        A("    v_add_u32 v8, s3, v8")
        A("    v_lshlrev_b32 v8, 6, v8")
        for i in range(8):
            A("    v_mov_b32 v%d, s%d" % (12 + i, 20 + 2 * i))
        A("    v_mov_b32 v20, s36")
        A("    v_mov_b32 v21, s37")
        A("    v_and_b32 v7, 63, v7")
        A("    v_cmp_eq_u32 vcc, 0, v7")
        A("    s_and_saveexec_b64 s[14:15], vcc")
        A("    global_store_dwordx4 v8, v[12:15], s[12:13]")
        A("    global_store_dwordx4 v8, v[16:19], s[12:13] offset:16")
        A("    global_store_dwordx2 v8, v[20:21], s[12:13] offset:32")
    if probe is not None:
        ST(6)
        A("    s_waitcnt vmcnt(0)")
        ST(7)
        A("    s_waitcnt lgkmcnt(0)")
        A("    s_not_b32 s40, s20")
        A("    v_mov_b32 v8, 0")
        A("    v_mov_b32 v9, s40")
        A("    v_cmp_eq_u32 vcc, 0, v7")
        A("    s_and_saveexec_b64 s[14:15], vcc")
        A("    s_cbranch_execz L_noat")
        A("    global_atomic_umax v8, v9, s[12:13] sc1")
        A("L_noat:")
        A("    s_mov_b64 exec, s[14:15]")
        A("    s_add_u32 s40, s20, 1500")
        A("L_spin1:")
        A("    s_sleep 4")
        A("    s_memrealtime s[42:43]")
        A("    s_waitcnt lgkmcnt(0)")
        A("    s_sub_u32 s44, s42, s40")
        A("    s_cmp_lt_i32 s44, 0")
        A("    s_cbranch_scc1 L_spin1")
        A("    global_load_dword v9, v8, s[12:13] sc0 sc1")
        A("    s_waitcnt vmcnt(0)")
        A("    v_readfirstlane_b32 s41, v9")
        A("    s_nop 3")
        A("    s_not_b32 s41, s41")
        if own:
            A("    s_sub_u32 s45, s%d, s20" % (20 + 2 * probe))
        else:
            A("    s_sub_u32 s45, s%d, s41" % (20 + 2 * probe))
        A("    s_max_i32 s45, s45, 0")
        A("    s_min_u32 s45, s45, 1000")
        A("    s_mul_i32 s45, s45, %d" % amp)
        A("    s_sub_u32 s46, s20, s41")
        A("    s_max_i32 s46, s46, 0")
        A("    s_min_u32 s46, s46, 1000")
        A("    s_sub_u32 s40, s20, s46")
        A("    s_add_u32 s40, s40, s45")
        A("    s_add_u32 s40, s40, 2000")
        A("L_spin2:")
        A("    s_sleep 1")
        A("    s_memrealtime s[42:43]")
        A("    s_waitcnt lgkmcnt(0)")
        A("    s_sub_u32 s44, s42, s40")
        A("    s_cmp_lt_i32 s44, 0")
        A("    s_cbranch_scc1 L_spin2")
    if spin:
        A("    s_waitcnt vmcnt(0) lgkmcnt(0)")
        A("    s_add_u32 s40, s40, %d" % spin)
        A("L_spin:")
        A("    s_memrealtime s[42:43]")
        A("    s_waitcnt lgkmcnt(0)")
        A("    s_sub_u32 s44, s42, s40")
        A("    s_cmp_lt_i32 s44, 0")
        A("    s_cbranch_scc1 L_spin")
    A("L_end:")
    A("    s_endpgm")
    nv = TM + 8
    A('.section .rodata,"a"')
    A(".p2align 6")
    A(".amdhsa_kernel %s_kernel" % NAME)
    A("  .amdhsa_next_free_vgpr %d" % nv)
    A("  .amdhsa_next_free_sgpr %d" % (48 if (stamp or spin or probe is not None) else 16))
    A("  .amdhsa_accum_offset %d" % ((nv + 3) // 4 * 4))
    A("  .amdhsa_group_segment_fixed_size 0")
    A("  .amdhsa_kernarg_size 40")
    A("  .amdhsa_user_sgpr_count 2")
    A("  .amdhsa_user_sgpr_kernarg_segment_ptr 1")
    A("  .amdhsa_system_sgpr_workgroup_id_x 1")
    A("  .amdhsa_float_denorm_mode_32 3")
    A(".end_amdhsa_kernel")
    return "\n".join(L) + "\n"

if __name__ == "__main__":
    import json
    out = sys.argv[1]
    kw = json.loads(sys.argv[2]) if len(sys.argv) > 2 else {}
    open(out, "w").write(gen(**kw))
```

```python
import sys, struct, json

NAME = "standalone__rmsnorm__sampling"
ROWS = 8192
ROWB = 1280
HEADER = """; Kernarg layout for this problem (40 bytes, ptrs only, base s[0:1]):
"""
FL = {"S": "", "T": "sc0 sc1", "N": "nt", "U": "sc0 sc1 nt", "V": "sc1", "W": "sc1 nt", "X": "sc0 nt"}

def f32hex(x):
    return "0x%08x" % struct.unpack("<I", struct.pack("<f", x))[0]

def gen(waves=8, st="N", ldflag="", fence="dummy", fence_at=0, gmode="w0", stamp=False, prio=False, dot=False, wmap=0, xswz=0, al=1, st2=None, split=4, early=0, est="T", kdin=0, probe=None, amp=10):
    threads = waves * 64
    rows_per_wg = waves * 4
    nwg = ROWS // rows_per_wg
    lds = 2560 if gmode == "w0" else 0
    L = []
    A = L.append
    A(HEADER + "; @launch grid=(%d,1,1) block=(%d,1,1) lds=%d" % (nwg, threads, lds))
    A('.amdgcn_target "amdgcn-amd-amdhsa--gfx950"')
    A(".text")
    A(".globl %s_kernel" % NAME)
    if al: A(".p2align 12                                 ; keep the whole kernel inside one 4 KiB page")
    A(".p2align 8")
    A(".type %s_kernel,@function" % NAME)
    A("%s_kernel:" % NAME)
    def ST(i):
        if stamp or (probe is not None and i in (0, probe)): A("    s_memrealtime s[%d:%d]" % (20 + 2 * i, 21 + 2 * i))
    ST(0)
    if stamp: A("    s_load_dwordx2 s[16:17], s[0:1], 32")
    A("    s_load_dwordx8 s[4:11], s[0:1], 0          ; s[4:5]=x s[6:7]=g s[8:9]=out")
    A("    s_cmp_ge_u32 s2, %d" % nwg)
    A("    s_cbranch_scc1 L_end")
    VC, VA, VG, VG2, VW2, VD = 1, 2, 3, 4, 5, 6
    ACC, ACC2, SC = 8, 9, 10
    XB = 12
    GU = 32
    P = 72
    nv = 112
    A("    v_readfirstlane_b32 s13, v0")
    A("@KD@")
    A("    v_and_b32 v%d, 15, v0" % VC)
    A("    v_lshlrev_b32 v%d, 4, v%d" % (VC, VC))
    if xswz:
        A("    s_and_b32 s14, s2, 7")
        A("    s_lshr_b32 s2, s2, 3")
        A("    s_mul_i32 s14, s14, %d" % (nwg // 8))
        A("    s_add_u32 s2, s2, s14")
    if wmap == 0:
        A("    v_lshrrev_b32 v%d, 4, v0" % VA)
        A("    s_mul_i32 s3, s2, %d" % (rows_per_wg * ROWB))
    else:
        A("    v_bfe_u32 v%d, v0, 4, %d" % (VA, 2 + (wmap.bit_length() - 1)))
        A("    s_lshr_b32 s14, s13, %d" % (6 + wmap.bit_length() - 1))
        A("    s_mul_i32 s14, s14, %d" % (nwg * wmap * 4 * ROWB))
        A("    s_mul_i32 s3, s2, %d" % (wmap * 4 * ROWB))
        A("    s_add_u32 s3, s3, s14")
    A("    v_mul_u32_u24 v%d, %d, v%d" % (VA, ROWB, VA))
    A("    v_add3_u32 v%d, v%d, v%d, s3" % (VA, VA, VC))
    A("    s_mov_b32 s12, 0xffff0000")
    A("    v_mov_b32 v%d, 0" % ACC)
    A("    v_mov_b32 v%d, 0" % ACC2)
    if stamp: A("    v_mov_b32 v%d, v0" % nv)
    Q = []
    def wait_for(item):
        idx = Q.index(item)
        A("    s_waitcnt vmcnt(%d)" % (len(Q) - idx - 1))
    def loads():
        for k in range(5):
            r = XB + 4 * k
            A("    global_load_dwordx4 v[%d:%d], v%d, s[4:5] offset:%d %s" % (r, r + 3, VA, 256 * k, ldflag))
    def lo(d, s):
        return ("    v_and_b32 v%d, 0xffff, v%d" if dot else "    v_lshlrev_b32 v%d, 16, v%d") % (d, s)
    if gmode == "w0":
        A("    s_cmp_lg_u32 s13, 0")
        A("    s_cbranch_scc1 L_other")
        if prio: A("    s_setprio 3")
        A("    v_lshlrev_b32 v%d, 4, v0" % VG)
        A("    v_lshlrev_b32 v%d, 2, v0" % VG2)
        A("    v_and_b32 v%d, 0xf0, v%d" % (VW2, VG2))
        A("    v_and_b32 v%d, 1, v0" % VD)
        A("    v_lshl_add_u32 v%d, v%d, 3, v%d" % (VW2, VD, VW2))
        A("    v_bfe_u32 v%d, v0, 1, 1" % VD)
        A("    v_mul_u32_u24 v%d, 1280, v%d" % (VD, VD))
        A("    v_add_u32 v%d, v%d, v%d" % (VW2, VD, VW2))
        A("    s_waitcnt lgkmcnt(0)")
        ST(1)
        A("    global_load_dwordx4 v[%d:%d], v%d, s[6:7]" % (P, P + 3, VG))
        A("    global_load_dword v%d, v%d, s[6:7] offset:1024" % (P + 4, VG2))
        loads()
        if fence == "early":
            A("    s_barrier")
            A("    global_load_dword v%d, v%d, s[6:7]" % (VD, VC))
        ST(2)
        A("    s_waitcnt vmcnt(%d)" % (6 if fence == "early" else 5))
        for j in range(5):
            A(lo(GU + 2 * j, P + j))
            A("    v_and_b32 v%d, s12, v%d" % (GU + 2 * j + 1, P + j))
        A("    ds_write_b128 v%d, v[%d:%d]" % (VG, GU, GU + 3))
        A("    ds_write_b128 v%d, v[%d:%d] offset:1280" % (VG, GU + 4, GU + 7))
        A("    ds_write_b64 v%d, v[%d:%d] offset:1024" % (VW2, GU + 8, GU + 9))
        if prio: A("    s_setprio 0")
        A("    s_waitcnt lgkmcnt(0)")
        A("    s_branch L_join")
        A("L_other:")
        A("    s_waitcnt lgkmcnt(0)")
        ST(1)
        loads()
        if fence == "early":
            A("    s_barrier")
            A("    global_load_dword v%d, v%d, s[6:7]" % (VD, VC))
        ST(2)
        A("L_join:")
        for k in range(5): Q.append(("x", k))
        if fence == "early": Q.append("d")
        A("    s_barrier")
        if fence == "postbar":
            A("    global_load_dword v%d, v%d, s[6:7]" % (VD, VC))
            Q.append("d")
        for k in range(5):
            for h in range(2):
                r = GU + 8 * k + 4 * h
                A("    ds_read_b128 v[%d:%d], v%d offset:%d" % (r, r + 3, VC, 1280 * h + 256 * k))
        if stamp == 2:
            A("    s_waitcnt lgkmcnt(0)")
            ST(2)
    else:
        A("    s_waitcnt lgkmcnt(0)")
        ST(1)
        for k in range(5):
            r = P + 20 + 4 * k
            A("    global_load_dwordx4 v[%d:%d], v%d, s[6:7] offset:%d" % (r, r + 3, VC, 256 * k))
        loads()
        for k in range(5): Q.append(("x", k))
        ST(2)
        A("    s_waitcnt vmcnt(5)")
        for j in range(20):
            A(lo(GU + 2 * j, P + 20 + j))
            A("    v_and_b32 v%d, s12, v%d" % (GU + 2 * j + 1, P + 20 + j))
    if fence == "role":
        A("    s_cmp_lt_u32 s13, %d" % (threads // 2))
        A("    s_cbranch_scc1 L_old1")
        A("    s_waitcnt vmcnt(%d)" % (4 - fence_at))
        A("    s_barrier")
        A("L_old1:")
    def prework(k):
        out = []
        r = XB + 4 * k
        if dot:
            if gmode == "w0": out.append("    s_waitcnt lgkmcnt(%d)" % (8 - 2 * k))
            for j in range(4):
                p = P + 8 * k + 2 * j
                g = GU + 8 * k + 2 * j
                out.append("    v_dot2_f32_bf16 v%d, v%d, v%d, 0" % (p, r + j, g))
                out.append("    v_dot2_f32_bf16 v%d, v%d, v%d, 0" % (p + 1, r + j, g + 1))
            return out
        for j in range(4):
            p = P + 8 * k + 2 * j
            out.append("    v_lshlrev_b32 v%d, 16, v%d" % (p, r + j))
            out.append("    v_and_b32 v%d, s12, v%d" % (p + 1, r + j))
        if gmode == "w0" and stamp != 2: out.append("    s_waitcnt lgkmcnt(%d)" % (8 - 2 * k))
        for j in range(4):
            p = P + 8 * k + 2 * j
            g = GU + 8 * k + 2 * j
            out.append("    v_pk_mul_f32 v[%d:%d], v[%d:%d], v[%d:%d]" % (p, p + 1, p, p + 1, g, g + 1))
        return out
    for k in range(5):
        wait_for(("x", k))
        if k == 0: ST(3)
        if k == 4: ST(4)
        if fence == "dummy" and k == fence_at:
            A("    global_load_dword v%d, v%d, s[6:7]" % (VD, VC))
            Q.append("d")
        r = XB + 4 * k
        for j in range(4):
            a = ACC if j % 2 == 0 else ACC2
            A("    v_dot2c_f32_bf16 v%d, v%d, v%d" % (a, r + j, r + j))
        if k < 4: L.extend(prework(k))
    pw = prework(4)
    def fill(n):
        for _ in range(n):
            A(pw.pop(0) if pw else "    s_nop 0")
    fill(3)
    A("    v_add_f32 v%d, v%d, v%d" % (ACC, ACC, ACC2))
    ms = ["quad_perm:[1,0,3,2]", "quad_perm:[2,3,0,1]", "row_half_mirror", "row_mirror"]
    for i, m in enumerate(ms):
        if i == 0:
            A("    v_mov_b32 v%d, %s" % (ACC2, f32hex(1e-6)))
            fill(1)
        else:
            fill(2)
        A("    v_add_f32_dpp v%d, v%d, v%d %s row_mask:0xf bank_mask:0xf" % (ACC, ACC, ACC, m))
    A("    v_fmac_f32 v%d, %s, v%d" % (ACC2, f32hex(1.0 / 640), ACC))
    A("    v_rsq_f32 v%d, v%d" % (SC, ACC2))
    fill(max(1, len(pw)))
    def fin(k):
        r = XB + 4 * k
        for j in range(4):
            p = P + 8 * k + 2 * j
            A("    v_pk_mul_f32 v[%d:%d], v[%d:%d], v[%d:%d] op_sel_hi:[1,0]" % (p, p + 1, p, p + 1, SC, SC + 1))
        for j in range(4):
            p = P + 8 * k + 2 * j
            A("    v_cvt_pk_bf16_f32 v%d, v%d, v%d" % (r + j, p, p + 1))
    def store(k, s=None):
        r = XB + 4 * k
        A("    global_store_dwordx4 v%d, v[%d:%d], s[8:9] offset:%d %s" % (VA, r, r + 3, 256 * k, FL[(s or st)[k % len(s or st)]]))
    if fence == "none":
        ST(5)
        for k in range(5):
            fin(k); store(k)
    else:
        for k in range(5): fin(k)
        if early:
            A("    s_cmp_ge_u32 s13, %d" % (early * 64))
            A("    s_cbranch_scc1 L_late")
            for k in range(5): store(k, est)
            A("    s_endpgm")
            A("L_late:")
        if fence == "dummy" and fence_at == 5:
            A("    global_load_dword v%d, v%d, s[6:7]" % (VD, VC))
        if fence in ("dummy", "early", "postbar"): A("    s_waitcnt vmcnt(0)")
        elif fence == "barrier": A("    s_barrier")
        elif fence == "role":
            A("    s_cbranch_scc0 L_young2")
            A("    s_barrier")
            A("L_young2:")
        ST(5)
        if st2:
            A("    s_cmp_ge_u32 s13, %d" % (split * 64))
            A("    s_cbranch_scc1 L_st2")
        for k in range(5): store(k)
        if st2:
            A("    s_endpgm")
            A("L_st2:")
            for k in range(5): store(k, st2)
    if probe == 7:
        A("    s_waitcnt vmcnt(0)")
        ST(7)
    if stamp:
        ST(6)
        A("    s_waitcnt vmcnt(0)")
        ST(7)
        A("    s_getreg_b32 s36, hwreg(HW_REG_XCC_ID)")
        A("    s_getreg_b32 s37, hwreg(HW_REG_HW_ID)")
        A("    s_waitcnt lgkmcnt(0)")
        A("    v_lshrrev_b32 v8, 6, v%d" % nv)
        A("    s_mul_i32 s3, s2, %d" % waves)
        A("    v_add_u32 v8, s3, v8")
        A("    v_lshlrev_b32 v8, 6, v8")
        for i in range(8):
            A("    v_mov_b32 v%d, s%d" % (12 + i, 20 + 2 * i))
        A("    v_mov_b32 v20, s36")
        A("    v_mov_b32 v21, s37")
        A("    v_and_b32 v7, 63, v%d" % nv)
        A("    v_cmp_eq_u32 vcc, 0, v7")
        A("    s_and_saveexec_b64 s[14:15], vcc")
        A("    global_store_dwordx4 v8, v[12:15], s[16:17]")
        A("    global_store_dwordx4 v8, v[16:19], s[16:17] offset:16")
        A("    global_store_dwordx2 v8, v[20:21], s[16:17] offset:32")
        nv += 1
    if probe is not None:
        A("    s_waitcnt vmcnt(0) lgkmcnt(0)")
        A("    s_add_u32 s40, s20, 600")
        A("L_spin0:")
        A("    s_sleep 4")
        A("    s_memrealtime s[42:43]")
        A("    s_waitcnt lgkmcnt(0)")
        A("    s_sub_u32 s44, s42, s40")
        A("    s_cmp_lt_i32 s44, 0")
        A("    s_cbranch_scc1 L_spin0")
        A("    s_not_b32 s40, s20")
        A("    v_mov_b32 v8, 0")
        A("    v_mov_b32 v9, s40")
        A("    v_cmp_eq_u32 vcc, 0, v0")
        A("    s_and_saveexec_b64 s[14:15], vcc")
        A("    s_cbranch_execz L_noat")
        A("    global_atomic_umax v8, v9, s[10:11] sc1")
        A("L_noat:")
        A("    s_mov_b64 exec, s[14:15]")
        A("    s_add_u32 s40, s20, 1500")
        A("L_spin1:")
        A("    s_sleep 4")
        A("    s_memrealtime s[42:43]")
        A("    s_waitcnt lgkmcnt(0)")
        A("    s_sub_u32 s44, s42, s40")
        A("    s_cmp_lt_i32 s44, 0")
        A("    s_cbranch_scc1 L_spin1")
        A("    global_load_dword v9, v8, s[10:11] sc0 sc1")
        A("    s_waitcnt vmcnt(0)")
        A("    v_readfirstlane_b32 s41, v9")
        A("    s_nop 3")
        A("    s_not_b32 s41, s41")
        A("    s_sub_u32 s45, s%d, s41" % (20 + 2 * probe))
        A("    s_max_i32 s45, s45, 0")
        A("    s_min_u32 s45, s45, 1000")
        A("    s_mul_i32 s45, s45, %d" % amp)
        A("    s_sub_u32 s46, s20, s41")
        A("    s_max_i32 s46, s46, 0")
        A("    s_min_u32 s46, s46, 1000")
        A("    s_sub_u32 s40, s20, s46")
        A("    s_add_u32 s40, s40, s45")
        A("    s_add_u32 s40, s40, 2000")
        A("L_spin2:")
        A("    s_sleep 1")
        A("    s_memrealtime s[42:43]")
        A("    s_waitcnt lgkmcnt(0)")
        A("    s_sub_u32 s44, s42, s40")
        A("    s_cmp_lt_i32 s44, 0")
        A("    s_cbranch_scc1 L_spin2")
    A("L_end:")
    A("    s_endpgm")
    body_end = len(L)
    if not kdin:
        A('.section .rodata,"a"')
        A(".p2align 6")
    A(".amdhsa_kernel %s_kernel" % NAME)
    A("  .amdhsa_next_free_vgpr %d" % nv)
    A("  .amdhsa_next_free_sgpr %d" % (48 if (stamp or probe is not None) else 16))
    A("  .amdhsa_accum_offset %d" % ((nv + 3) // 4 * 4))
    A("  .amdhsa_group_segment_fixed_size 0")
    A("  .amdhsa_kernarg_size 40")
    A("  .amdhsa_user_sgpr_count 2")
    A("  .amdhsa_user_sgpr_kernarg_segment_ptr 1")
    A("  .amdhsa_system_sgpr_workgroup_id_x 1")
    A("  .amdhsa_float_denorm_mode_32 3")
    A(".end_amdhsa_kernel")
    if kdin:
        kd = L[body_end:]
        del L[body_end:]
        i = L.index("@KD@")
        L[i:i + 1] = ["    s_branch L_afterkd", ".p2align 6"] + [".fill %d, 4, 0xbf800000" % (16 * (kdin - 1))] + kd + ["L_afterkd:"]
    else:
        L.remove("@KD@")
    return "\n".join(L) + "\n"

if __name__ == "__main__":
    out = sys.argv[1]
    kw = json.loads(sys.argv[2]) if len(sys.argv) > 2 else {}
    open(out, "w").write(gen(**kw))
```

```python
import sys, struct, json

NAME = "standalone__rmsnorm__sampling"
ROWS = 8192
ROWB = 1280
HEADER = """; Kernarg layout for this problem (40 bytes, ptrs only, base s[0:1]):
"""
FL = {"S": "", "T": "sc0 sc1", "N": "nt", "U": "sc0 sc1 nt", "V": "sc1", "W": "sc1 nt", "X": "sc0 nt"}

def f32hex(x):
    return "0x%08x" % struct.unpack("<I", struct.pack("<f", x))[0]

def gen(acc="plain", st="N", ldflag="nt", touch=0, stamp=False, w0tail=False):
    waves = 8
    threads = 512
    nwg = 256
    lds = 2560
    L = []
    A = L.append
    A(HEADER + "; @launch grid=(%d,1,1) block=(%d,1,1) lds=%d" % (nwg, threads, lds))
    A('.amdgcn_target "amdgcn-amd-amdhsa--gfx950"')
    A(".text")
    A(".globl %s_kernel" % NAME)
    A(".p2align 12                                 ; keep the whole kernel inside one 4 KiB page")
    A(".p2align 8")
    A(".type %s_kernel,@function" % NAME)
    A("%s_kernel:" % NAME)
    def ST(i):
        if stamp: A("    s_memrealtime s[%d:%d]" % (20 + 2 * i, 21 + 2 * i))
    ST(0)
    if stamp: A("    s_load_dwordx2 s[16:17], s[0:1], 32")
    A("    s_load_dwordx8 s[4:11], s[0:1], 0          ; s[4:5]=x s[6:7]=g s[8:9]=out")
    A("    s_cmpk_ge_u32 s2, %d" % nwg)
    A("    s_cbranch_scc1 L_end")
    VC, VA, VG, VG2, VW2, VD, ONE = 1, 2, 3, 4, 5, 6, 7
    ACC, ACC2, SC = 8, 9, 10
    XB = 12
    GU = 32
    P = 72
    T = 112
    nv = 120 if acc != "plain" else 112
    A("    v_readfirstlane_b32 s13, v0")
    A("    v_and_b32 v%d, 15, v0" % VC)
    A("    v_lshlrev_b32 v%d, 4, v%d" % (VC, VC))
    A("    s_and_b32 s14, s2, 7")
    A("    s_lshr_b32 s2, s2, 3")
    A("    s_lshl_b32 s14, s14, 5")
    A("    s_add_u32 s2, s2, s14")
    A("    v_lshrrev_b32 v%d, 4, v0" % VA)
    A("    s_mul_i32 s3, s2, %d" % (32 * ROWB))
    A("    v_mul_u32_u24 v%d, %d, v%d" % (VA, ROWB, VA))
    A("    v_add3_u32 v%d, v%d, v%d, s3" % (VA, VA, VC))
    A("    s_mov_b32 s12, 0xffff0000")
    A("    v_mov_b32 v%d, 0" % ACC)
    A("    v_mov_b32 v%d, 0" % ACC2)
    if acc != "plain": A("    v_mov_b32 v%d, 0x3f803f80" % ONE)
    if stamp: A("    v_mov_b32 v%d, v0" % nv)
    def loads():
        for k in range(5):
            r = XB + 4 * k
            A("    global_load_dwordx4 v[%d:%d], v%d, s[4:5] offset:%d %s" % (r, r + 3, VA, 256 * k, ldflag))
    def w0path():
        A("    v_lshlrev_b32 v%d, 4, v0" % VG)
        A("    v_lshlrev_b32 v%d, 2, v0" % VG2)
        A("    v_and_b32 v%d, 0xf0, v%d" % (VW2, VG2))
        A("    v_and_b32 v%d, 1, v0" % VD)
        A("    v_lshl_add_u32 v%d, v%d, 3, v%d" % (VW2, VD, VW2))
        A("    v_bfe_u32 v%d, v0, 1, 1" % VD)
        A("    v_mul_u32_u24 v%d, 1280, v%d" % (VD, VD))
        A("    v_add_u32 v%d, v%d, v%d" % (VW2, VD, VW2))
        A("    s_waitcnt lgkmcnt(0)")
        ST(1)
        A("    global_load_dwordx4 v[%d:%d], v%d, s[6:7]" % (P, P + 3, VG))
        A("    global_load_dword v%d, v%d, s[6:7] offset:1024" % (P + 4, VG2))
        loads()
        A("    s_waitcnt vmcnt(5)")
        for j in range(5):
            A("    v_lshlrev_b32 v%d, 16, v%d" % (GU + 2 * j, P + j))
            A("    v_and_b32 v%d, s12, v%d" % (GU + 2 * j + 1, P + j))
        A("    ds_write_b128 v%d, v[%d:%d]" % (VG, GU, GU + 3))
        A("    ds_write_b128 v%d, v[%d:%d] offset:1280" % (VG, GU + 4, GU + 7))
        A("    ds_write_b64 v%d, v[%d:%d] offset:1024" % (VW2, GU + 8, GU + 9))
        A("    s_waitcnt lgkmcnt(0)")
        A("    s_branch L_join")
    if touch:
        A("    s_cmpk_eq_u32 s13, %d" % (7 * 64))
        A("    s_cbranch_scc1 L_touch")
        A("L_back:")
    A("    s_cmp_lg_u32 s13, 0")
    A("    s_cbranch_scc1 L_other")
    w0path()
    A("L_other:")
    A("    s_waitcnt lgkmcnt(0)")
    ST(1)
    loads()
    A("L_join:")
    A("    s_barrier")
    A("    global_load_dword v%d, v%d, s[6:7]" % (VD, VC))
    for k in range(5):
        for h in range(2):
            r = GU + 8 * k + 4 * h
            A("    ds_read_b128 v[%d:%d], v%d offset:%d" % (r, r + 3, VC, 1280 * h + 256 * k))
    if touch: A("    s_cmp_eq_u32 s13, 1")
    if stamp:
        A("    s_waitcnt lgkmcnt(0)")
        ST(2)
    def unpack(k):
        out = []
        r = XB + 4 * k
        for j in range(4):
            p = P + 8 * k + 2 * j
            out.append("    v_lshlrev_b32 v%d, 16, v%d" % (p, r + j))
            out.append("    v_and_b32 v%d, s12, v%d" % (p + 1, r + j))
        return out
    def gmul(k):
        out = []
        if not stamp: out.append("    s_waitcnt lgkmcnt(%d)" % (8 - 2 * k))
        for j in range(4):
            p = P + 8 * k + 2 * j
            g = GU + 8 * k + 2 * j
            out.append("    v_pk_mul_f32 v[%d:%d], v[%d:%d], v[%d:%d]" % (p, p + 1, p, p + 1, g, g + 1))
        return out
    def sumsq(k):
        out = []
        r = XB + 4 * k
        if acc == "plain":
            for j in range(4):
                out.append("    v_dot2c_f32_bf16 v%d, v%d, v%d" % (ACC if j % 2 == 0 else ACC2, r + j, r + j))
        else:
            for j in range(4):
                p = P + 8 * k + 2 * j
                out.append("    v_pk_mul_f32 v[%d:%d], v[%d:%d], v[%d:%d]" % (T + 2 * j, T + 2 * j + 1, p, p + 1, p, p + 1))
            for j in range(4):
                out.append("    v_cvt_pk_bf16_f32 v%d, v%d, v%d" % (T + j, T + 2 * j, T + 2 * j + 1))
            for j in range(4):
                out.append("    v_dot2c_f32_bf16 v%d, v%d, v%d" % (ACC if j % 2 == 0 else ACC2, T + j, ONE))
        return out
    pw = []
    for k in range(5):
        if touch and k == touch:
            A("L_touch:")
            A("    s_cbranch_scc1 L_back")
        A("    s_waitcnt vmcnt(%d)" % (5 - k))
        if k == 0: ST(3)
        if k == 4: ST(4)
        if acc == "plain":
            L.extend(sumsq(k))
            rest = unpack(k) + gmul(k)
        else:
            L.extend(unpack(k) + sumsq(k))
            rest = gmul(k) if acc != "full" else []
        if k < 3 or (k == 3 and acc == "plain"): L.extend(rest)
        else: pw += rest
    def fill(n):
        while n > 0:
            if pw: A(pw.pop(0)); n -= 1
            else: A("    s_nop %d" % (n - 1)); n = 0
    fill(3)
    A("    v_add_f32 v%d, v%d, v%d" % (ACC, ACC, ACC2))
    ms = ["quad_perm:[1,0,3,2]", "quad_perm:[2,3,0,1]", "row_half_mirror", "row_mirror"]
    for i, m in enumerate(ms):
        if i == 0 and acc == "plain":
            A("    v_mov_b32 v%d, %s" % (ACC2, f32hex(1e-6)))
            fill(1)
        else:
            fill(2)
        A("    v_add_f32_dpp v%d, v%d, v%d %s row_mask:0xf bank_mask:0xf" % (ACC, ACC, ACC, m))
    if acc == "plain":
        A("    v_fmac_f32 v%d, %s, v%d" % (ACC2, f32hex(1.0 / 640), ACC))
        A("    v_rsq_f32 v%d, v%d" % (SC, ACC2))
    else:
        A("    v_mul_f32 v%d, %s, v%d" % (ACC, f32hex(1.0 / 640), ACC))
        A("    v_cvt_pk_bf16_f32 v%d, 0, v%d" % (ACC, ACC))
        A("    v_add_f32 v%d, %s, v%d" % (ACC, f32hex(1e-6), ACC))
        A("    v_cvt_pk_bf16_f32 v%d, 0, v%d" % (ACC, ACC))
        A("    v_sqrt_f32 v%d, v%d" % (ACC, ACC))
        fill(1)
        A("    v_cvt_pk_bf16_f32 v%d, 0, v%d" % (ACC, ACC))
        A("    v_rcp_f32 v%d, v%d" % (SC, ACC))
    fill(max(1, len(pw)))
    if acc == "full" and not stamp: A("    s_waitcnt lgkmcnt(0)")
    for k in range(5):
        r = XB + 4 * k
        for j in range(4):
            p = P + 8 * k + 2 * j
            A("    v_pk_mul_f32 v[%d:%d], v[%d:%d], v[%d:%d] op_sel_hi:[1,0]" % (p, p + 1, p, p + 1, SC, SC + 1))
        for j in range(4):
            p = P + 8 * k + 2 * j
            A("    v_cvt_pk_bf16_f32 v%d, v%d, v%d" % (r + j, p, p + 1))
        if acc == "full":
            L.extend(unpack(k))
            L.extend([x for x in gmul(k) if "waitcnt" not in x])
            for j in range(4):
                p = P + 8 * k + 2 * j
                A("    v_cvt_pk_bf16_f32 v%d, v%d, v%d" % (r + j, p, p + 1))
    A("    s_waitcnt vmcnt(0)")
    ST(5)
    for k in range(5):
        r = XB + 4 * k
        A("    global_store_dwordx4 v%d, v[%d:%d], s[8:9] offset:%d %s" % (VA, r, r + 3, 256 * k, FL[st]))
    if stamp:
        ST(6)
        A("    s_waitcnt vmcnt(0)")
        ST(7)
        A("    s_getreg_b32 s36, hwreg(HW_REG_XCC_ID)")
        A("    s_getreg_b32 s37, hwreg(HW_REG_HW_ID)")
        A("    s_waitcnt lgkmcnt(0)")
        A("    v_lshrrev_b32 v8, 6, v%d" % nv)
        A("    s_mul_i32 s3, s2, %d" % waves)
        A("    v_add_u32 v8, s3, v8")
        A("    v_lshlrev_b32 v8, 6, v8")
        for i in range(8):
            A("    v_mov_b32 v%d, s%d" % (12 + i, 20 + 2 * i))
        A("    v_mov_b32 v20, s36")
        A("    v_mov_b32 v21, s37")
        A("    v_and_b32 v7, 63, v%d" % nv)
        A("    v_cmp_eq_u32 vcc, 0, v7")
        A("    s_and_saveexec_b64 s[14:15], vcc")
        A("    global_store_dwordx4 v8, v[12:15], s[16:17]")
        A("    global_store_dwordx4 v8, v[16:19], s[16:17] offset:16")
        A("    global_store_dwordx2 v8, v[20:21], s[16:17] offset:32")
        nv += 1
    A("L_end:")
    A("    s_endpgm")
    A('.section .rodata,"a"')
    A(".p2align 6")
    A(".amdhsa_kernel %s_kernel" % NAME)
    A("  .amdhsa_next_free_vgpr %d" % nv)
    A("  .amdhsa_next_free_sgpr %d" % (48 if stamp else 16))
    A("  .amdhsa_accum_offset %d" % ((nv + 3) // 4 * 4))
    A("  .amdhsa_group_segment_fixed_size 0")
    A("  .amdhsa_kernarg_size 40")
    A("  .amdhsa_user_sgpr_count 2")
    A("  .amdhsa_user_sgpr_kernarg_segment_ptr 1")
    A("  .amdhsa_system_sgpr_workgroup_id_x 1")
    A("  .amdhsa_float_denorm_mode_32 3")
    A(".end_amdhsa_kernel")
    return "\n".join(L) + "\n"

if __name__ == "__main__":
    out = sys.argv[1]
    kw = json.loads(sys.argv[2]) if len(sys.argv) > 2 else {}
    open(out, "w").write(gen(**kw))
```

```python
import sys, struct, json

NAME = "standalone__rmsnorm__sampling"
ROWS = 8192
ROWB = 1280
HEADER = """; Kernarg layout for this problem (40 bytes, ptrs only, base s[0:1]):
"""
FL = {"S": "", "T": "sc0 sc1", "N": "nt", "U": "sc0 sc1 nt", "V": "sc1", "W": "sc1 nt", "X": "sc0 nt"}

def f32hex(x):
    return "0x%08x" % struct.unpack("<I", struct.pack("<f", x))[0]

def gen(acc="plain", st="N", ldflag="nt", touch=0, stamp=False, gafter=False, prio=False, gflag="", dflag="", second=False, numa=None, dbgptr=False):
    waves = 8
    threads = 512
    nwg = 256
    lds = 2560
    L = []
    A = L.append
    A(HEADER + "; @launch grid=(%d,1,1) block=(%d,1,1) lds=%d" % (nwg, threads, lds))
    A('.amdgcn_target "amdgcn-amd-amdhsa--gfx950"')
    A(".text")
    A(".globl %s_kernel" % NAME)
    A(".p2align 12                                 ; keep the whole kernel inside one 4 KiB page")
    A(".p2align 8")
    A(".type %s_kernel,@function" % NAME)
    A("%s_kernel:" % NAME)
    def ST(i):
        if stamp: A("    s_memrealtime s[%d:%d]" % (20 + 2 * i, 21 + 2 * i))
    ST(0)
    if stamp: A("    s_load_dwordx2 s[16:17], s[0:1], 32")
    A("    s_load_dwordx8 s[4:11], s[0:1], 0          ; s[4:5]=x s[6:7]=g s[8:9]=out")
    A("    s_cmpk_ge_u32 s2, %d" % nwg)
    A("    s_cbranch_scc1 L_end")
    VC, VA, VG, VG2, VW2, VD, ONE = 1, 2, 3, 4, 5, 6, 7
    ACC, ACC2, SC = 8, 9, 10
    XB = 12
    GU = 32
    P = 72
    T = 112
    nv = 120 if acc != "plain" else 112
    A("    v_readfirstlane_b32 s13, v0")
    A("    v_and_b32 v%d, 15, v0" % VC)
    A("    v_lshlrev_b32 v%d, 4, v%d" % (VC, VC))
    if numa is None:
        A("    s_and_b32 s14, s2, 7")
        A("    s_lshr_b32 s2, s2, 3")
        A("    s_lshl_b32 s14, s14, 5")
        A("    s_add_u32 s2, s2, s14")
        A("    v_lshrrev_b32 v%d, 4, v0" % VA)
        A("    s_mul_i32 s3, s2, %d" % (32 * ROWB))
    else:
        A("    s_and_b32 s14, s2, 3")
        A("    s_lshl_b32 s14, s14, 5")
        A("    s_lshr_b32 s15, s2, 3")
        A("    s_add_u32 s14, s14, s15")
        A("    s_mul_i32 s3, s14, %d" % (64 * ROWB))
        A("    s_add_u32 s15, s3, %d" % (32 * ROWB))
        A("    s_lshr_b32 s15, s15, 19")
        A("    s_xor_b32 s15, s15, s2")
        A("    s_xor_b32 s15, s15, %d" % (4 * numa))
        A("    s_bitcmp1_b32 s15, 2")
        A("    s_cselect_b32 s50, 6, 0")
        A("    s_cselect_b32 s51, 7, 6")
        A("    s_cselect_b32 s52, 14, 12")
        A("    s_cselect_b32 s53, 20, 18")
        A("    s_cselect_b32 s54, 26, 25")
        A("    s_cselect_b32 s55, 6, 7")
        A("    s_cselect_b32 s56, 7, 6")
        A("    v_lshrrev_b32 v3, 4, v0")
        A("    v_add_u32 v%d, s50, v3" % VA)
        A("    v_mov_b32 v4, s55")
        A("    v_mov_b32 v5, s56")
        for th, stp in ((51, 4), (52, 4), (53, 5), (54, 5)):
            A("    v_cmp_le_u32 vcc, s%d, v3" % th)
            A("    s_nop 1")
            A("    v_cndmask_b32 v6, 0, v%d, vcc" % stp)
            A("    v_add_u32 v%d, v%d, v6" % (VA, VA))
    A("    v_mul_u32_u24 v%d, %d, v%d" % (VA, ROWB, VA))
    A("    v_add3_u32 v%d, v%d, v%d, s3" % (VA, VA, VC))
    A("    s_mov_b32 s12, 0xffff0000")
    A("    v_mov_b32 v%d, 0" % ACC)
    A("    v_mov_b32 v%d, 0" % ACC2)
    if acc != "plain": A("    v_mov_b32 v%d, 0x3f803f80" % ONE)
    if stamp: A("    v_mov_b32 v%d, v0" % nv)
    def loads():
        for k in range(5):
            r = XB + 4 * k
            A("    global_load_dwordx4 v[%d:%d], v%d, s[4:5] offset:%d %s" % (r, r + 3, VA, 256 * k, ldflag))
    def w0path():
        if prio: A("    s_setprio 3")
        A("    v_lshlrev_b32 v%d, 4, v0" % VG)
        A("    v_lshlrev_b32 v%d, 2, v0" % VG2)
        A("    v_and_b32 v%d, 0xf0, v%d" % (VW2, VG2))
        A("    v_and_b32 v%d, 1, v0" % VD)
        A("    v_lshl_add_u32 v%d, v%d, 3, v%d" % (VW2, VD, VW2))
        A("    v_bfe_u32 v%d, v0, 1, 1" % VD)
        A("    v_mul_u32_u24 v%d, 1280, v%d" % (VD, VD))
        A("    v_add_u32 v%d, v%d, v%d" % (VW2, VD, VW2))
        A("    s_waitcnt lgkmcnt(0)")
        ST(1)
        if gafter: loads()
        A("    global_load_dwordx4 v[%d:%d], v%d, s[6:7] %s" % (P, P + 3, VG, gflag))
        A("    global_load_dword v%d, v%d, s[6:7] offset:1024 %s" % (P + 4, VG2, gflag))
        if not gafter: loads()
        if prio: A("    s_setprio 0")
        A("    s_waitcnt vmcnt(%d)" % (0 if gafter else 5))
        for j in range(5):
            A("    v_lshlrev_b32 v%d, 16, v%d" % (GU + 2 * j, P + j))
            A("    v_and_b32 v%d, s12, v%d" % (GU + 2 * j + 1, P + j))
        A("    ds_write_b128 v%d, v[%d:%d]" % (VG, GU, GU + 3))
        A("    ds_write_b128 v%d, v[%d:%d] offset:1280" % (VG, GU + 4, GU + 7))
        A("    ds_write_b64 v%d, v[%d:%d] offset:1024" % (VW2, GU + 8, GU + 9))
        A("    s_waitcnt lgkmcnt(0)")
        A("    s_branch L_join")
    if touch:
        A("    s_cmpk_eq_u32 s13, %d" % (7 * 64))
        A("    s_cbranch_scc1 L_touch")
        A("L_back:")
    A("    s_cmp_lg_u32 s13, 0")
    A("    s_cbranch_scc1 L_other")
    w0path()
    A("L_other:")
    A("    s_waitcnt lgkmcnt(0)")
    ST(1)
    loads()
    A("L_join:")
    A("    s_barrier")
    A("    global_load_dword v%d, v%d, s[6:7] %s" % (VD, VC, dflag))
    for k in range(5):
        for h in range(2):
            r = GU + 8 * k + 4 * h
            A("    ds_read_b128 v[%d:%d], v%d offset:%d" % (r, r + 3, VC, 1280 * h + 256 * k))
    if touch: A("    s_cmp_eq_u32 s13, 1")
    if stamp:
        A("    s_waitcnt lgkmcnt(0)")
        ST(2)
    def unpack(k):
        out = []
        r = XB + 4 * k
        for j in range(4):
            p = P + 8 * k + 2 * j
            out.append("    v_lshlrev_b32 v%d, 16, v%d" % (p, r + j))
            out.append("    v_and_b32 v%d, s12, v%d" % (p + 1, r + j))
        return out
    def gmul(k):
        out = []
        if not stamp: out.append("    s_waitcnt lgkmcnt(%d)" % (8 - 2 * k))
        for j in range(4):
            p = P + 8 * k + 2 * j
            g = GU + 8 * k + 2 * j
            out.append("    v_pk_mul_f32 v[%d:%d], v[%d:%d], v[%d:%d]" % (p, p + 1, p, p + 1, g, g + 1))
        return out
    def sumsq(k):
        out = []
        r = XB + 4 * k
        if acc == "plain":
            for j in range(4):
                out.append("    v_dot2c_f32_bf16 v%d, v%d, v%d" % (ACC if j % 2 == 0 else ACC2, r + j, r + j))
        else:
            for j in range(4):
                p = P + 8 * k + 2 * j
                out.append("    v_pk_mul_f32 v[%d:%d], v[%d:%d], v[%d:%d]" % (T + 2 * j, T + 2 * j + 1, p, p + 1, p, p + 1))
            for j in range(4):
                out.append("    v_cvt_pk_bf16_f32 v%d, v%d, v%d" % (T + j, T + 2 * j, T + 2 * j + 1))
            for j in range(4):
                out.append("    v_dot2c_f32_bf16 v%d, v%d, v%d" % (ACC if j % 2 == 0 else ACC2, T + j, ONE))
        return out
    pw = []
    for k in range(5):
        if touch and k == touch:
            A("L_touch:")
            A("    s_cbranch_scc1 L_back")
        A("    s_waitcnt vmcnt(%d)" % (5 - k))
        if k == 0: ST(3)
        if k == 4: ST(4)
        if acc == "plain":
            L.extend(sumsq(k))
            rest = unpack(k) + gmul(k)
        else:
            L.extend(unpack(k) + sumsq(k))
            rest = gmul(k) if acc != "full" else []
        if k < 3 or (k == 3 and acc == "plain"): L.extend(rest)
        else: pw += rest
    def fill(n):
        while n > 0:
            if pw: A(pw.pop(0)); n -= 1
            else: A("    s_nop %d" % (n - 1)); n = 0
    fill(3)
    A("    v_add_f32 v%d, v%d, v%d" % (ACC, ACC, ACC2))
    ms = ["quad_perm:[1,0,3,2]", "quad_perm:[2,3,0,1]", "row_half_mirror", "row_mirror"]
    for i, m in enumerate(ms):
        if i == 0 and acc == "plain":
            A("    v_mov_b32 v%d, %s" % (ACC2, f32hex(1e-6)))
            fill(1)
        else:
            fill(2)
        A("    v_add_f32_dpp v%d, v%d, v%d %s row_mask:0xf bank_mask:0xf" % (ACC, ACC, ACC, m))
    if acc == "plain":
        A("    v_fmac_f32 v%d, %s, v%d" % (ACC2, f32hex(1.0 / 640), ACC))
        A("    v_rsq_f32 v%d, v%d" % (SC, ACC2))
    else:
        A("    v_mul_f32 v%d, %s, v%d" % (ACC, f32hex(1.0 / 640), ACC))
        A("    v_cvt_pk_bf16_f32 v%d, 0, v%d" % (ACC, ACC))
        A("    v_add_f32 v%d, %s, v%d" % (ACC, f32hex(1e-6), ACC))
        A("    v_cvt_pk_bf16_f32 v%d, 0, v%d" % (ACC, ACC))
        A("    v_sqrt_f32 v%d, v%d" % (ACC, ACC))
        fill(1)
        A("    v_cvt_pk_bf16_f32 v%d, 0, v%d" % (ACC, ACC))
        A("    v_rcp_f32 v%d, v%d" % (SC, ACC))
    fill(max(1, len(pw)))
    if acc == "full" and not stamp: A("    s_waitcnt lgkmcnt(0)")
    for k in range(5):
        r = XB + 4 * k
        for j in range(4):
            p = P + 8 * k + 2 * j
            A("    v_pk_mul_f32 v[%d:%d], v[%d:%d], v[%d:%d] op_sel_hi:[1,0]" % (p, p + 1, p, p + 1, SC, SC + 1))
        for j in range(4):
            p = P + 8 * k + 2 * j
            A("    v_cvt_pk_bf16_f32 v%d, v%d, v%d" % (r + j, p, p + 1))
        if acc == "full":
            L.extend(unpack(k))
            L.extend([x for x in gmul(k) if "waitcnt" not in x])
            for j in range(4):
                p = P + 8 * k + 2 * j
                A("    v_cvt_pk_bf16_f32 v%d, v%d, v%d" % (r + j, p, p + 1))
    A("    s_waitcnt vmcnt(0)")
    ST(5)
    for k in range(5):
        r = XB + 4 * k
        A("    global_store_dwordx4 v%d, v[%d:%d], s[8:9] offset:%d %s" % (VA, r, r + 3, 256 * k, FL[st]))
    if dbgptr:
        A("    s_or_b32 s14, s2, s13")
        A("    s_cmp_lg_u32 s14, 0")
        A("    s_cbranch_scc1 L_end")
        for i in range(8): A("    v_mov_b32 v%d, s%d" % (32 + i, 4 + i))
        A("    v_mov_b32 v40, s0")
        A("    v_mov_b32 v41, s1")
        A("    v_mov_b32 v42, 0")
        A("    global_store_dwordx4 v42, v[32:35], s[10:11]")
        A("    global_store_dwordx4 v42, v[36:39], s[10:11] offset:16")
        A("    global_store_dwordx2 v42, v[40:41], s[10:11] offset:32")
    if stamp:
        ST(6)
        A("    s_waitcnt vmcnt(0)")
        ST(7)
        A("    s_getreg_b32 s36, hwreg(HW_REG_XCC_ID)")
        A("    s_getreg_b32 s37, hwreg(HW_REG_HW_ID)")
        A("    s_waitcnt lgkmcnt(0)")
        A("    v_lshrrev_b32 v8, 6, v%d" % nv)
        A("    s_mul_i32 s3, s2, %d" % waves)
        A("    v_add_u32 v8, s3, v8")
        A("    v_lshlrev_b32 v8, 6, v8")
        for i in range(8):
            A("    v_mov_b32 v%d, s%d" % (12 + i, 20 + 2 * i))
        A("    v_mov_b32 v20, s36")
        A("    v_mov_b32 v21, s37")
        A("    v_and_b32 v7, 63, v%d" % nv)
        A("    v_cmp_eq_u32 vcc, 0, v7")
        A("    s_and_saveexec_b64 s[14:15], vcc")
        A("    global_store_dwordx4 v8, v[12:15], s[16:17]")
        A("    global_store_dwordx4 v8, v[16:19], s[16:17] offset:16")
        A("    global_store_dwordx2 v8, v[20:21], s[16:17] offset:32")
        nv += 1
    A("L_end:")
    A("    s_endpgm")
    A('.section .rodata,"a"')
    A(".p2align 6")
    A(".amdhsa_kernel %s_kernel" % NAME)
    A("  .amdhsa_next_free_vgpr %d" % nv)
    A("  .amdhsa_next_free_sgpr %d" % (60 if numa is not None else 48 if stamp else 16))
    A("  .amdhsa_accum_offset %d" % ((nv + 3) // 4 * 4))
    A("  .amdhsa_group_segment_fixed_size 0")
    A("  .amdhsa_kernarg_size 40")
    A("  .amdhsa_user_sgpr_count 2")
    A("  .amdhsa_user_sgpr_kernarg_segment_ptr 1")
    A("  .amdhsa_system_sgpr_workgroup_id_x 1")
    A("  .amdhsa_float_denorm_mode_32 3")
    A(".end_amdhsa_kernel")
    return "\n".join(L) + "\n"

if __name__ == "__main__":
    out = sys.argv[1]
    kw = json.loads(sys.argv[2]) if len(sys.argv) > 2 else {}
    open(out, "w").write(gen(**kw))
```

```python
import sys, struct, json

NAME = "standalone__rmsnorm__sampling"
ROWS = 8192
ROWB = 1280
HEADER = """; Kernarg layout for this problem (40 bytes, ptrs only, base s[0:1]):
"""
FL = {"S": "", "T": "sc0 sc1", "N": "nt", "U": "sc0 sc1 nt", "V": "sc1", "W": "sc1 nt", "X": "sc0 nt"}

def f32hex(x):
    return "0x%08x" % struct.unpack("<I", struct.pack("<f", x))[0]

def gen(acc="plain", st="N", ldflag="nt", touch=0, stamp=False, gafter=False, prio=False, gflag="", dflag="", second=False, numa=None, dbgptr=False, bal=0, xswz=1):
    waves = 8
    threads = 512
    nwg = 256
    lds = 2560
    L = []
    A = L.append
    A(HEADER + "; @launch grid=(%d,1,1) block=(%d,1,1) lds=%d" % (nwg, threads, lds))
    A('.amdgcn_target "amdgcn-amd-amdhsa--gfx950"')
    A(".text")
    A(".globl %s_kernel" % NAME)
    A(".p2align 12                                 ; keep the whole kernel inside one 4 KiB page")
    A(".p2align 8")
    A(".type %s_kernel,@function" % NAME)
    A("%s_kernel:" % NAME)
    def ST(i):
        if stamp: A("    s_memrealtime s[%d:%d]" % (20 + 2 * i, 21 + 2 * i))
    ST(0)
    if stamp: A("    s_load_dwordx2 s[16:17], s[0:1], 32")
    A("    s_load_dwordx8 s[4:11], s[0:1], 0          ; s[4:5]=x s[6:7]=g s[8:9]=out")
    A("    s_cmpk_ge_u32 s2, %d" % nwg)
    A("    s_cbranch_scc1 L_end")
    VC, VA, VG, VG2, VW2, VD, ONE = 1, 2, 3, 4, 5, 6, 7
    ACC, ACC2, SC = 8, 9, 10
    XB = 12
    GU = 32
    P = 72
    T = 112
    nv = 120 if acc != "plain" else 112
    A("    v_readfirstlane_b32 s13, v0")
    A("    v_and_b32 v%d, 15, v0" % VC)
    A("    v_lshlrev_b32 v%d, 4, v%d" % (VC, VC))
    if numa is None:
        if xswz:
            A("    s_and_b32 s14, s2, 7")
            A("    s_lshr_b32 s2, s2, 3")
            A("    s_lshl_b32 s14, s14, 5")
            A("    s_add_u32 s2, s2, s14")
        if bal == 0:
            A("    v_lshrrev_b32 v%d, 4, v0" % VA)
            A("    s_mul_i32 s3, s2, %d" % (32 * ROWB))
        elif bal == 1:
            A("    v_and_b32 v%d, 48, v0" % VA)
            A("    s_lshr_b32 s14, s2, 1")
            A("    s_lshl_b32 s14, s14, 6")
            A("    s_and_b32 s15, s2, 1")
            A("    s_add_u32 s14, s14, s15")
            A("    s_lshr_b32 s15, s13, 5")
            A("    s_add_u32 s14, s14, s15")
            A("    s_mul_i32 s3, s14, %d" % ROWB)
        elif bal == 2:
            A("    v_bfe_u32 v%d, v0, 4, 1" % VA)
            A("    v_and_or_b32 v%d, v0, 32, v%d" % (VA, VA))
            A("    s_lshr_b32 s14, s2, 1")
            A("    s_lshl_b32 s14, s14, 2")
            A("    s_and_b32 s15, s2, 1")
            A("    s_or_b32 s14, s14, s15")
            A("    s_lshl_b32 s14, s14, 4")
            A("    s_lshr_b32 s15, s13, 5")
            A("    s_add_u32 s14, s14, s15")
            A("    s_mul_i32 s3, s14, %d" % ROWB)
    else:
        A("    s_and_b32 s14, s2, 3")
        A("    s_lshl_b32 s14, s14, 5")
        A("    s_lshr_b32 s15, s2, 3")
        A("    s_add_u32 s14, s14, s15")
        A("    s_mul_i32 s3, s14, %d" % (64 * ROWB))
        A("    s_add_u32 s15, s3, %d" % (32 * ROWB))
        A("    s_lshr_b32 s15, s15, 19")
        A("    s_xor_b32 s15, s15, s2")
        A("    s_xor_b32 s15, s15, %d" % (4 * numa))
        A("    s_bitcmp1_b32 s15, 2")
        A("    s_cselect_b32 s50, 6, 0")
        A("    s_cselect_b32 s51, 7, 6")
        A("    s_cselect_b32 s52, 14, 12")
        A("    s_cselect_b32 s53, 20, 18")
        A("    s_cselect_b32 s54, 26, 25")
        A("    s_cselect_b32 s55, 6, 7")
        A("    s_cselect_b32 s56, 7, 6")
        A("    v_lshrrev_b32 v3, 4, v0")
        A("    v_add_u32 v%d, s50, v3" % VA)
        A("    v_mov_b32 v4, s55")
        A("    v_mov_b32 v5, s56")
        for th, stp in ((51, 4), (52, 4), (53, 5), (54, 5)):
            A("    v_cmp_le_u32 vcc, s%d, v3" % th)
            A("    s_nop 1")
            A("    v_cndmask_b32 v6, 0, v%d, vcc" % stp)
            A("    v_add_u32 v%d, v%d, v6" % (VA, VA))
    A("    v_mul_u32_u24 v%d, %d, v%d" % (VA, ROWB, VA))
    A("    v_add3_u32 v%d, v%d, v%d, s3" % (VA, VA, VC))
    A("    s_mov_b32 s12, 0xffff0000")
    A("    v_mov_b32 v%d, 0" % ACC)
    A("    v_mov_b32 v%d, 0" % ACC2)
    if acc != "plain": A("    v_mov_b32 v%d, 0x3f803f80" % ONE)
    if stamp: A("    v_mov_b32 v%d, v0" % nv)
    def loads():
        for k in range(5):
            r = XB + 4 * k
            A("    global_load_dwordx4 v[%d:%d], v%d, s[4:5] offset:%d %s" % (r, r + 3, VA, 256 * k, ldflag))
    def w0path():
        if prio: A("    s_setprio 3")
        A("    v_lshlrev_b32 v%d, 4, v0" % VG)
        A("    v_lshlrev_b32 v%d, 2, v0" % VG2)
        A("    v_and_b32 v%d, 0xf0, v%d" % (VW2, VG2))
        A("    v_and_b32 v%d, 1, v0" % VD)
        A("    v_lshl_add_u32 v%d, v%d, 3, v%d" % (VW2, VD, VW2))
        A("    v_bfe_u32 v%d, v0, 1, 1" % VD)
        A("    v_mul_u32_u24 v%d, 1280, v%d" % (VD, VD))
        A("    v_add_u32 v%d, v%d, v%d" % (VW2, VD, VW2))
        A("    s_waitcnt lgkmcnt(0)")
        ST(1)
        if gafter: loads()
        A("    global_load_dwordx4 v[%d:%d], v%d, s[6:7] %s" % (P, P + 3, VG, gflag))
        A("    global_load_dword v%d, v%d, s[6:7] offset:1024 %s" % (P + 4, VG2, gflag))
        if not gafter: loads()
        if prio: A("    s_setprio 0")
        A("    s_waitcnt vmcnt(%d)" % (0 if gafter else 5))
        for j in range(5):
            A("    v_lshlrev_b32 v%d, 16, v%d" % (GU + 2 * j, P + j))
            A("    v_and_b32 v%d, s12, v%d" % (GU + 2 * j + 1, P + j))
        A("    ds_write_b128 v%d, v[%d:%d]" % (VG, GU, GU + 3))
        A("    ds_write_b128 v%d, v[%d:%d] offset:1280" % (VG, GU + 4, GU + 7))
        A("    ds_write_b64 v%d, v[%d:%d] offset:1024" % (VW2, GU + 8, GU + 9))
        A("    s_waitcnt lgkmcnt(0)")
        A("    s_branch L_join")
    if touch:
        A("    s_cmpk_eq_u32 s13, %d" % (7 * 64))
        A("    s_cbranch_scc1 L_touch")
        A("L_back:")
    A("    s_cmp_lg_u32 s13, 0")
    A("    s_cbranch_scc1 L_other")
    w0path()
    A("L_other:")
    A("    s_waitcnt lgkmcnt(0)")
    ST(1)
    loads()
    A("L_join:")
    A("    s_barrier")
    A("    global_load_dword v%d, v%d, s[6:7] %s" % (VD, VC, dflag))
    for k in range(5):
        for h in range(2):
            r = GU + 8 * k + 4 * h
            A("    ds_read_b128 v[%d:%d], v%d offset:%d" % (r, r + 3, VC, 1280 * h + 256 * k))
    if touch: A("    s_cmp_eq_u32 s13, 1")
    if stamp:
        A("    s_waitcnt lgkmcnt(0)")
        ST(2)
    def unpack(k):
        out = []
        r = XB + 4 * k
        for j in range(4):
            p = P + 8 * k + 2 * j
            out.append("    v_lshlrev_b32 v%d, 16, v%d" % (p, r + j))
            out.append("    v_and_b32 v%d, s12, v%d" % (p + 1, r + j))
        return out
    def gmul(k):
        out = []
        if not stamp: out.append("    s_waitcnt lgkmcnt(%d)" % (8 - 2 * k))
        for j in range(4):
            p = P + 8 * k + 2 * j
            g = GU + 8 * k + 2 * j
            out.append("    v_pk_mul_f32 v[%d:%d], v[%d:%d], v[%d:%d]" % (p, p + 1, p, p + 1, g, g + 1))
        return out
    def sumsq(k):
        out = []
        r = XB + 4 * k
        if acc == "plain":
            for j in range(4):
                out.append("    v_dot2c_f32_bf16 v%d, v%d, v%d" % (ACC if j % 2 == 0 else ACC2, r + j, r + j))
        else:
            for j in range(4):
                p = P + 8 * k + 2 * j
                out.append("    v_pk_mul_f32 v[%d:%d], v[%d:%d], v[%d:%d]" % (T + 2 * j, T + 2 * j + 1, p, p + 1, p, p + 1))
            for j in range(4):
                out.append("    v_cvt_pk_bf16_f32 v%d, v%d, v%d" % (T + j, T + 2 * j, T + 2 * j + 1))
            for j in range(4):
                out.append("    v_dot2c_f32_bf16 v%d, v%d, v%d" % (ACC if j % 2 == 0 else ACC2, T + j, ONE))
        return out
    pw = []
    for k in range(5):
        if touch and k == touch:
            A("L_touch:")
            A("    s_cbranch_scc1 L_back")
        A("    s_waitcnt vmcnt(%d)" % (5 - k))
        if k == 0: ST(3)
        if k == 4: ST(4)
        if acc == "plain":
            L.extend(sumsq(k))
            rest = unpack(k) + gmul(k)
        else:
            L.extend(unpack(k) + sumsq(k))
            rest = gmul(k) if acc != "full" else []
        if k < 3 or (k == 3 and acc == "plain"): L.extend(rest)
        else: pw += rest
    def fill(n):
        while n > 0:
            if pw: A(pw.pop(0)); n -= 1
            else: A("    s_nop %d" % (n - 1)); n = 0
    fill(3)
    A("    v_add_f32 v%d, v%d, v%d" % (ACC, ACC, ACC2))
    ms = ["quad_perm:[1,0,3,2]", "quad_perm:[2,3,0,1]", "row_half_mirror", "row_mirror"]
    for i, m in enumerate(ms):
        if i == 0 and acc == "plain":
            A("    v_mov_b32 v%d, %s" % (ACC2, f32hex(1e-6)))
            fill(1)
        else:
            fill(2)
        A("    v_add_f32_dpp v%d, v%d, v%d %s row_mask:0xf bank_mask:0xf" % (ACC, ACC, ACC, m))
    if acc == "plain":
        A("    v_fmac_f32 v%d, %s, v%d" % (ACC2, f32hex(1.0 / 640), ACC))
        A("    v_rsq_f32 v%d, v%d" % (SC, ACC2))
    else:
        A("    v_mul_f32 v%d, %s, v%d" % (ACC, f32hex(1.0 / 640), ACC))
        A("    v_cvt_pk_bf16_f32 v%d, 0, v%d" % (ACC, ACC))
        A("    v_add_f32 v%d, %s, v%d" % (ACC, f32hex(1e-6), ACC))
        A("    v_cvt_pk_bf16_f32 v%d, 0, v%d" % (ACC, ACC))
        A("    v_sqrt_f32 v%d, v%d" % (ACC, ACC))
        fill(1)
        A("    v_cvt_pk_bf16_f32 v%d, 0, v%d" % (ACC, ACC))
        A("    v_rcp_f32 v%d, v%d" % (SC, ACC))
    fill(max(1, len(pw)))
    if acc == "full" and not stamp: A("    s_waitcnt lgkmcnt(0)")
    for k in range(5):
        r = XB + 4 * k
        for j in range(4):
            p = P + 8 * k + 2 * j
            A("    v_pk_mul_f32 v[%d:%d], v[%d:%d], v[%d:%d] op_sel_hi:[1,0]" % (p, p + 1, p, p + 1, SC, SC + 1))
        if acc == "full":
            for j in range(8):
                p = P + 8 * k + j
                A("    v_cvt_pk_bf16_f32 v%d, 0, v%d" % (p, p))
            L.extend([x for x in gmul(k) if "waitcnt" not in x])
        for j in range(4):
            p = P + 8 * k + 2 * j
            A("    v_cvt_pk_bf16_f32 v%d, v%d, v%d" % (r + j, p, p + 1))
    A("    s_waitcnt vmcnt(0)")
    ST(5)
    for k in range(5):
        r = XB + 4 * k
        A("    global_store_dwordx4 v%d, v[%d:%d], s[8:9] offset:%d %s" % (VA, r, r + 3, 256 * k, FL[st]))
    if dbgptr:
        A("    s_or_b32 s14, s2, s13")
        A("    s_cmp_lg_u32 s14, 0")
        A("    s_cbranch_scc1 L_end")
        for i in range(8): A("    v_mov_b32 v%d, s%d" % (32 + i, 4 + i))
        A("    v_mov_b32 v40, s0")
        A("    v_mov_b32 v41, s1")
        A("    v_mov_b32 v42, 0")
        A("    global_store_dwordx4 v42, v[32:35], s[10:11]")
        A("    global_store_dwordx4 v42, v[36:39], s[10:11] offset:16")
        A("    global_store_dwordx2 v42, v[40:41], s[10:11] offset:32")
    if stamp:
        ST(6)
        A("    s_waitcnt vmcnt(0)")
        ST(7)
        A("    s_getreg_b32 s36, hwreg(HW_REG_XCC_ID)")
        A("    s_getreg_b32 s37, hwreg(HW_REG_HW_ID)")
        A("    s_waitcnt lgkmcnt(0)")
        A("    v_lshrrev_b32 v8, 6, v%d" % nv)
        A("    s_mul_i32 s3, s2, %d" % waves)
        A("    v_add_u32 v8, s3, v8")
        A("    v_lshlrev_b32 v8, 6, v8")
        for i in range(8):
            A("    v_mov_b32 v%d, s%d" % (12 + i, 20 + 2 * i))
        A("    v_mov_b32 v20, s36")
        A("    v_mov_b32 v21, s37")
        A("    v_and_b32 v7, 63, v%d" % nv)
        A("    v_cmp_eq_u32 vcc, 0, v7")
        A("    s_and_saveexec_b64 s[14:15], vcc")
        A("    global_store_dwordx4 v8, v[12:15], s[16:17]")
        A("    global_store_dwordx4 v8, v[16:19], s[16:17] offset:16")
        A("    global_store_dwordx2 v8, v[20:21], s[16:17] offset:32")
        nv += 1
    A("L_end:")
    A("    s_endpgm")
    A('.section .rodata,"a"')
    A(".p2align 6")
    A(".amdhsa_kernel %s_kernel" % NAME)
    A("  .amdhsa_next_free_vgpr %d" % nv)
    A("  .amdhsa_next_free_sgpr %d" % (60 if numa is not None else 48 if stamp else 16))
    A("  .amdhsa_accum_offset %d" % ((nv + 3) // 4 * 4))
    A("  .amdhsa_group_segment_fixed_size 0")
    A("  .amdhsa_kernarg_size 40")
    A("  .amdhsa_user_sgpr_count 2")
    A("  .amdhsa_user_sgpr_kernarg_segment_ptr 1")
    A("  .amdhsa_system_sgpr_workgroup_id_x 1")
    A("  .amdhsa_float_denorm_mode_32 3")
    A(".end_amdhsa_kernel")
    return "\n".join(L) + "\n"

if __name__ == "__main__":
    out = sys.argv[1]
    kw = json.loads(sys.argv[2]) if len(sys.argv) > 2 else {}
    open(out, "w").write(gen(**kw))
```

```python
import sys, struct

NAME = "standalone__rmsnorm__sampling"
ROWB = 1280

def f32hex(x):
    return "0x%08x" % struct.unpack("<I", struct.pack("<f", x))[0]

L = []
A = L.append
def I(ins, comment=None):
    A("    %-62s; %s" % (ins, comment) if comment else "    " + ins)
def C(text):
    A("    ; " + text)

A("""; Kernarg layout for this problem (40 bytes, ptrs only, base s[0:1]):
; @launch grid=(256,1,1) block=(512,1,1) lds=2560
;
;
;
; This ordering only affects speed, never the result.""")
A('.amdgcn_target "amdgcn-amd-amdhsa--gfx950"')
A(".text")
A(".globl %s_kernel" % NAME)
A(".p2align 12      ; whole kernel inside one 4 KiB page: instruction prefetch stops at page ends")
A(".p2align 8")
A(".type %s_kernel,@function" % NAME)
A("%s_kernel:" % NAME)

VC, VA, VG, VG2, VW2, VD, ONE = 1, 2, 3, 4, 5, 6, 7
ACC, ACC2, SC = 8, 9, 10
XB, GU, P, T = 12, 32, 72, 112
NV = 120

I("s_load_dwordx8 s[4:11], s[0:1], 0", "s[4:5]=x  s[6:7]=g  s[8:9]=out")
I("s_cmpk_ge_u32 s2, 256", "workgroups past the data exit (all 256 real ones are full)")
I("s_cbranch_scc1 L_end")
I("v_readfirstlane_b32 s13, v0", "s13 = wave id * 64")
I("v_and_b32 v%d, 15, v0" % VC)
I("v_lshlrev_b32 v%d, 4, v%d" % (VC, VC), "v1 = 16 * (lane in row): byte column of chunk 0")
I("s_and_b32 s14, s2, 7", "block = (id & 7) * 32 + (id >> 3): ids that share an")
I("s_lshr_b32 s2, s2, 3", "XCD under round-robin dispatch take neighbouring rows")
I("s_lshl_b32 s14, s14, 5")
I("s_add_u32 s2, s2, s14")
I("v_lshrrev_b32 v%d, 4, v0" % VA, "row within the block (0..31)")
I("s_mul_i32 s3, s2, %d" % (32 * ROWB))
I("v_mul_u32_u24 v%d, %d, v%d" % (VA, ROWB, VA))
I("v_add3_u32 v%d, v%d, v%d, s3" % (VA, VA, VC), "v2 = byte offset of this lane's chunk 0 in x / out")
I("s_mov_b32 s12, 0xffff0000")
I("v_mov_b32 v%d, 0" % ACC)
I("v_mov_b32 v%d, 0" % ACC2)
I("v_mov_b32 v%d, 0x3f803f80" % ONE, "(1.0, 1.0) in bf16")
I("s_cmpk_eq_u32 s13, 448", "wave 7 visits L_touch once, so that the second half of the")
I("s_cbranch_scc1 L_touch", "code is fetched before the loads fill the memory queues")
A("L_back:")
I("s_cmp_lg_u32 s13, 0")
I("s_cbranch_scc1 L_other")

def loads():
    for k in range(5):
        r = XB + 4 * k
        I("global_load_dwordx4 v[%d:%d], v%d, s[4:5] offset:%d nt" % (r, r + 3, VA, 256 * k))

C("---- wave 0: fetch g (lane l: bytes 16l..16l+15 and dword 256+l), widen, publish in LDS")
C("LDS image: f32 elements 0..3 of 8-element group j at 16j, elements 4..7 at 1280 + 16j")
I("v_lshlrev_b32 v%d, 4, v0" % VG)
I("v_lshlrev_b32 v%d, 2, v0" % VG2)
I("v_and_b32 v%d, 0xf0, v%d" % (VW2, VG2))
I("v_and_b32 v%d, 1, v0" % VD)
I("v_lshl_add_u32 v%d, v%d, 3, v%d" % (VW2, VD, VW2))
I("v_bfe_u32 v%d, v0, 1, 1" % VD)
I("v_mul_u32_u24 v%d, 1280, v%d" % (VD, VD))
I("v_add_u32 v%d, v%d, v%d" % (VW2, VD, VW2), "v5 = (l>>2)*16 + (l&1)*8 + ((l>>1)&1)*1280")
I("s_waitcnt lgkmcnt(0)")
I("global_load_dwordx4 v[%d:%d], v%d, s[6:7]" % (P, P + 3, VG))
I("global_load_dword v%d, v%d, s[6:7] offset:1024" % (P + 4, VG2))
loads()
I("s_waitcnt vmcnt(5)")
for j in range(5):
    I("v_lshlrev_b32 v%d, 16, v%d" % (GU + 2 * j, P + j))
    I("v_and_b32 v%d, s12, v%d" % (GU + 2 * j + 1, P + j))
I("ds_write_b128 v%d, v[%d:%d]" % (VG, GU, GU + 3))
I("ds_write_b128 v%d, v[%d:%d] offset:1280" % (VG, GU + 4, GU + 7))
I("ds_write_b64 v%d, v[%d:%d] offset:1024" % (VW2, GU + 8, GU + 9))
I("s_waitcnt lgkmcnt(0)")
I("s_branch L_join")
A("L_other:")
I("s_waitcnt lgkmcnt(0)")
loads()
A("L_join:")
I("s_barrier", "g is in LDS; every wave has issued its x loads")
I("global_load_dword v%d, v%d, s[6:7]" % (VD, VC), "returns after all of them (value unused)")
for k in range(5):
    for h in range(2):
        r = GU + 8 * k + 4 * h
        I("ds_read_b128 v[%d:%d], v%d offset:%d" % (r, r + 3, VC, 1280 * h + 256 * k))
I("s_cmp_eq_u32 s13, 1", "SCC = 0 from here on (s13 is a multiple of 64)")
for k in range(5):
    C("---- chunk %d: widen to f32, square, round the squares to bf16, accumulate in f32" % k)
    I("s_waitcnt vmcnt(%d)" % (5 - k))
    r = XB + 4 * k
    for j in range(4):
        p = P + 8 * k + 2 * j
        I("v_lshlrev_b32 v%d, 16, v%d" % (p, r + j))
        I("v_and_b32 v%d, s12, v%d" % (p + 1, r + j))
    for j in range(4):
        p = P + 8 * k + 2 * j
        I("v_pk_mul_f32 v[%d:%d], v[%d:%d], v[%d:%d]" % (T + 2 * j, T + 2 * j + 1, p, p + 1, p, p + 1))
    for j in range(4):
        I("v_cvt_pk_bf16_f32 v%d, v%d, v%d" % (T + j, T + 2 * j, T + 2 * j + 1))
    for j in range(4):
        I("v_dot2c_f32_bf16 v%d, v%d, v%d" % (ACC if j % 2 == 0 else ACC2, T + j, ONE))
A("L_touch:")
I("s_cbranch_scc1 L_back", "taken only by wave 7's early visit")
I("s_nop 1", "3 wait states: dot result -> other VALU")
C("---- row sum over the 16 lanes of the row")
I("v_add_f32 v%d, v%d, v%d" % (ACC, ACC, ACC2))
for m in ["quad_perm:[1,0,3,2]", "quad_perm:[2,3,0,1]", "row_half_mirror", "row_mirror"]:
    I("s_nop 1")
    I("v_add_f32_dpp v%d, v%d, v%d %s row_mask:0xf bank_mask:0xf" % (ACC, ACC, ACC, m))
C("---- rms = bf16(sqrt(bf16(bf16(sum / 640) + 1e-6))); cvt_pk(0, v) leaves bf16(v) as an f32")
I("v_mul_f32 v%d, %s, v%d" % (ACC, f32hex(1.0 / 640), ACC))
I("v_cvt_pk_bf16_f32 v%d, 0, v%d" % (ACC, ACC))
I("v_add_f32 v%d, %s, v%d" % (ACC, f32hex(1e-6), ACC))
I("v_cvt_pk_bf16_f32 v%d, 0, v%d" % (ACC, ACC))
I("v_sqrt_f32 v%d, v%d" % (ACC, ACC))
I("s_nop 0")
I("v_cvt_pk_bf16_f32 v%d, 0, v%d" % (ACC, ACC))
I("v_rcp_f32 v%d, v%d" % (SC, ACC), "v10 = 1 / rms")
I("s_waitcnt lgkmcnt(0)", "g registers loaded (also the wait state after v_rcp)")
for k in range(5):
    C("---- chunk %d: out = bf16(bf16(x / rms) * g)" % k)
    r = XB + 4 * k
    for j in range(4):
        p = P + 8 * k + 2 * j
        I("v_pk_mul_f32 v[%d:%d], v[%d:%d], v[%d:%d] op_sel_hi:[1,0]" % (p, p + 1, p, p + 1, SC, SC + 1))
    for j in range(8):
        p = P + 8 * k + j
        I("v_cvt_pk_bf16_f32 v%d, 0, v%d" % (p, p))
    for j in range(4):
        p = P + 8 * k + 2 * j
        g = GU + 8 * k + 2 * j
        I("v_pk_mul_f32 v[%d:%d], v[%d:%d], v[%d:%d]" % (p, p + 1, p, p + 1, g, g + 1))
    for j in range(4):
        p = P + 8 * k + 2 * j
        I("v_cvt_pk_bf16_f32 v%d, v%d, v%d" % (r + j, p, p + 1))
I("s_waitcnt vmcnt(0)", "this CU's read phase is over")
for k in range(5):
    r = XB + 4 * k
    I("global_store_dwordx4 v%d, v[%d:%d], s[8:9] offset:%d nt" % (VA, r, r + 3, 256 * k))
A("L_end:")
I("s_endpgm")
A('.section .rodata,"a"')
A(".p2align 6")
A(".amdhsa_kernel %s_kernel" % NAME)
A("  .amdhsa_next_free_vgpr %d" % NV)
A("  .amdhsa_next_free_sgpr 16")
A("  .amdhsa_accum_offset %d" % NV)
A("  .amdhsa_group_segment_fixed_size 0")
A("  .amdhsa_kernarg_size 40")
A("  .amdhsa_user_sgpr_count 2")
A("  .amdhsa_user_sgpr_kernarg_segment_ptr 1")
A("  .amdhsa_system_sgpr_workgroup_id_x 1")
A("  .amdhsa_float_denorm_mode_32 3")
A(".end_amdhsa_kernel")
open(sys.argv[1], "w").write("\n".join(L) + "\n")
```

```python
import sys, struct, json

NAME = "standalone__rmsnorm__sampling"
ROWS = 8192
ROWB = 1280
HEADER = """; Kernarg layout for this problem (40 bytes, ptrs only, base s[0:1]):
"""
FL = {"S": "", "T": "sc0 sc1", "N": "nt", "U": "sc0 sc1 nt", "V": "sc1", "W": "sc1 nt", "X": "sc0 nt"}

def f32hex(x):
    return "0x%08x" % struct.unpack("<I", struct.pack("<f", x))[0]

def gen(waves=8, st="N", ldflag="", fence="dummy", fence_at=0, gmode="w0", stamp=False, prio=False, dot=False, wmap=0, xswz=0, al=1, st2=None, split=4, early=0, est="T", kdin=0, probe=None, amp=10, onx=None):
    threads = waves * 64
    rows_per_wg = waves * 4
    nwg = ROWS // rows_per_wg
    lds = 2560 if gmode == "w0" else 0
    L = []
    A = L.append
    A(HEADER + "; @launch grid=(%d,1,1) block=(%d,1,1) lds=%d" % (nwg, threads, lds))
    A('.amdgcn_target "amdgcn-amd-amdhsa--gfx950"')
    A(".text")
    A(".globl %s_kernel" % NAME)
    if al: A(".p2align 12                                 ; keep the whole kernel inside one 4 KiB page")
    A(".p2align 8")
    A(".type %s_kernel,@function" % NAME)
    A("%s_kernel:" % NAME)
    def ST(i):
        if stamp or (probe is not None and i in (0, probe)): A("    s_memrealtime s[%d:%d]" % (20 + 2 * i, 21 + 2 * i))
    ST(0)
    if stamp: A("    s_load_dwordx2 s[16:17], s[0:1], 32")
    A("    s_load_dwordx8 s[4:11], s[0:1], 0          ; s[4:5]=x s[6:7]=g s[8:9]=out")
    A("    s_cmp_ge_u32 s2, %d" % nwg)
    A("    s_cbranch_scc1 L_end")
    VC, VA, VG, VG2, VW2, VD = 1, 2, 3, 4, 5, 6
    ACC, ACC2, SC = 8, 9, 10
    XB = 12
    GU = 32
    P = 72
    nv = 112
    A("    v_readfirstlane_b32 s13, v0")
    A("@KD@")
    A("    v_and_b32 v%d, 15, v0" % VC)
    A("    v_lshlrev_b32 v%d, 4, v%d" % (VC, VC))
    if xswz:
        A("    s_and_b32 s14, s2, 7")
        A("    s_lshr_b32 s2, s2, 3")
        A("    s_mul_i32 s14, s14, %d" % (nwg // 8))
        A("    s_add_u32 s2, s2, s14")
    if wmap == 0:
        A("    v_lshrrev_b32 v%d, 4, v0" % VA)
        A("    s_mul_i32 s3, s2, %d" % (rows_per_wg * ROWB))
    else:
        A("    v_bfe_u32 v%d, v0, 4, %d" % (VA, 2 + (wmap.bit_length() - 1)))
        A("    s_lshr_b32 s14, s13, %d" % (6 + wmap.bit_length() - 1))
        A("    s_mul_i32 s14, s14, %d" % (nwg * wmap * 4 * ROWB))
        A("    s_mul_i32 s3, s2, %d" % (wmap * 4 * ROWB))
        A("    s_add_u32 s3, s3, s14")
    A("    v_mul_u32_u24 v%d, %d, v%d" % (VA, ROWB, VA))
    A("    v_add3_u32 v%d, v%d, v%d, s3" % (VA, VA, VC))
    A("    s_mov_b32 s12, 0xffff0000")
    A("    v_mov_b32 v%d, 0" % ACC)
    A("    v_mov_b32 v%d, 0" % ACC2)
    if stamp: A("    v_mov_b32 v%d, v0" % nv)
    Q = []
    def wait_for(item):
        idx = Q.index(item)
        A("    s_waitcnt vmcnt(%d)" % (len(Q) - idx - 1))
    def loads():
        for k in range(5):
            r = XB + 4 * k
            A("    global_load_dwordx4 v[%d:%d], v%d, s[4:5] offset:%d %s" % (r, r + 3, VA, 256 * k, ldflag))
    def lo(d, s):
        return ("    v_and_b32 v%d, 0xffff, v%d" if dot else "    v_lshlrev_b32 v%d, 16, v%d") % (d, s)
    if gmode == "w0":
        A("    s_cmp_lg_u32 s13, 0")
        A("    s_cbranch_scc1 L_other")
        if prio: A("    s_setprio 3")
        A("    v_lshlrev_b32 v%d, 4, v0" % VG)
        A("    v_lshlrev_b32 v%d, 2, v0" % VG2)
        A("    v_and_b32 v%d, 0xf0, v%d" % (VW2, VG2))
        A("    v_and_b32 v%d, 1, v0" % VD)
        A("    v_lshl_add_u32 v%d, v%d, 3, v%d" % (VW2, VD, VW2))
        A("    v_bfe_u32 v%d, v0, 1, 1" % VD)
        A("    v_mul_u32_u24 v%d, 1280, v%d" % (VD, VD))
        A("    v_add_u32 v%d, v%d, v%d" % (VW2, VD, VW2))
        A("    s_waitcnt lgkmcnt(0)")
        ST(1)
        A("    global_load_dwordx4 v[%d:%d], v%d, s[6:7]" % (P, P + 3, VG))
        A("    global_load_dword v%d, v%d, s[6:7] offset:1024" % (P + 4, VG2))
        loads()
        if fence == "early":
            A("    s_barrier")
            A("    global_load_dword v%d, v%d, s[6:7]" % (VD, VC))
        ST(2)
        A("    s_waitcnt vmcnt(%d)" % (6 if fence == "early" else 5))
        for j in range(5):
            A(lo(GU + 2 * j, P + j))
            A("    v_and_b32 v%d, s12, v%d" % (GU + 2 * j + 1, P + j))
        A("    ds_write_b128 v%d, v[%d:%d]" % (VG, GU, GU + 3))
        A("    ds_write_b128 v%d, v[%d:%d] offset:1280" % (VG, GU + 4, GU + 7))
        A("    ds_write_b64 v%d, v[%d:%d] offset:1024" % (VW2, GU + 8, GU + 9))
        if prio: A("    s_setprio 0")
        A("    s_waitcnt lgkmcnt(0)")
        A("    s_branch L_join")
        A("L_other:")
        A("    s_waitcnt lgkmcnt(0)")
        ST(1)
        loads()
        if fence == "early":
            A("    s_barrier")
            A("    global_load_dword v%d, v%d, s[6:7]" % (VD, VC))
        ST(2)
        A("L_join:")
        for k in range(5): Q.append(("x", k))
        if fence == "early": Q.append("d")
        A("    s_barrier")
        if fence == "postbar":
            A("    global_load_dword v%d, v%d, s[6:7]" % (VD, VC))
            Q.append("d")
        for k in range(5):
            for h in range(2):
                r = GU + 8 * k + 4 * h
                A("    ds_read_b128 v[%d:%d], v%d offset:%d" % (r, r + 3, VC, 1280 * h + 256 * k))
        if stamp == 2:
            A("    s_waitcnt lgkmcnt(0)")
            ST(2)
    else:
        A("    s_waitcnt lgkmcnt(0)")
        ST(1)
        for k in range(5):
            r = P + 20 + 4 * k
            A("    global_load_dwordx4 v[%d:%d], v%d, s[6:7] offset:%d" % (r, r + 3, VC, 256 * k))
        loads()
        for k in range(5): Q.append(("x", k))
        ST(2)
        A("    s_waitcnt vmcnt(5)")
        for j in range(20):
            A(lo(GU + 2 * j, P + 20 + j))
            A("    v_and_b32 v%d, s12, v%d" % (GU + 2 * j + 1, P + 20 + j))
    if fence == "role":
        A("    s_cmp_lt_u32 s13, %d" % (threads // 2))
        A("    s_cbranch_scc1 L_old1")
        A("    s_waitcnt vmcnt(%d)" % (4 - fence_at))
        A("    s_barrier")
        A("L_old1:")
    def prework(k):
        out = []
        r = XB + 4 * k
        if dot:
            if gmode == "w0": out.append("    s_waitcnt lgkmcnt(%d)" % (8 - 2 * k))
            for j in range(4):
                p = P + 8 * k + 2 * j
                g = GU + 8 * k + 2 * j
                out.append("    v_dot2_f32_bf16 v%d, v%d, v%d, 0" % (p, r + j, g))
                out.append("    v_dot2_f32_bf16 v%d, v%d, v%d, 0" % (p + 1, r + j, g + 1))
            return out
        for j in range(4):
            p = P + 8 * k + 2 * j
            out.append("    v_lshlrev_b32 v%d, 16, v%d" % (p, r + j))
            out.append("    v_and_b32 v%d, s12, v%d" % (p + 1, r + j))
        if gmode == "w0" and stamp != 2: out.append("    s_waitcnt lgkmcnt(%d)" % (8 - 2 * k))
        for j in range(4):
            p = P + 8 * k + 2 * j
            g = GU + 8 * k + 2 * j
            out.append("    v_pk_mul_f32 v[%d:%d], v[%d:%d], v[%d:%d]" % (p, p + 1, p, p + 1, g, g + 1))
        return out
    for k in range(5):
        wait_for(("x", k))
        if k == 0: ST(3)
        if k == 4: ST(4)
        if fence == "dummy" and k == fence_at:
            A("    global_load_dword v%d, v%d, s[6:7]" % (VD, VC))
            Q.append("d")
        r = XB + 4 * k
        for j in range(4):
            a = ACC if j % 2 == 0 else ACC2
            A("    v_dot2c_f32_bf16 v%d, v%d, v%d" % (a, r + j, r + j))
        if k < 4: L.extend(prework(k))
    pw = prework(4)
    def fill(n):
        for _ in range(n):
            A(pw.pop(0) if pw else "    s_nop 0")
    fill(3)
    A("    v_add_f32 v%d, v%d, v%d" % (ACC, ACC, ACC2))
    ms = ["quad_perm:[1,0,3,2]", "quad_perm:[2,3,0,1]", "row_half_mirror", "row_mirror"]
    for i, m in enumerate(ms):
        if i == 0:
            A("    v_mov_b32 v%d, %s" % (ACC2, f32hex(1e-6)))
            fill(1)
        else:
            fill(2)
        A("    v_add_f32_dpp v%d, v%d, v%d %s row_mask:0xf bank_mask:0xf" % (ACC, ACC, ACC, m))
    A("    v_fmac_f32 v%d, %s, v%d" % (ACC2, f32hex(1.0 / 640), ACC))
    A("    v_rsq_f32 v%d, v%d" % (SC, ACC2))
    fill(max(1, len(pw)))
    def fin(k):
        r = XB + 4 * k
        for j in range(4):
            p = P + 8 * k + 2 * j
            A("    v_pk_mul_f32 v[%d:%d], v[%d:%d], v[%d:%d] op_sel_hi:[1,0]" % (p, p + 1, p, p + 1, SC, SC + 1))
        for j in range(4):
            p = P + 8 * k + 2 * j
            A("    v_cvt_pk_bf16_f32 v%d, v%d, v%d" % (r + j, p, p + 1))
    def store(k, s=None):
        r = XB + 4 * k
        A("    global_store_dwordx4 v%d, v[%d:%d], s[8:9] offset:%d %s" % (VA, r, r + 3, 256 * k, FL[(s or st)[k % len(s or st)]]))
    if fence == "none":
        ST(5)
        for k in range(5):
            fin(k); store(k)
    else:
        for k in range(5): fin(k)
        if early:
            A("    s_cmp_ge_u32 s13, %d" % (early * 64))
            A("    s_cbranch_scc1 L_late")
            for k in range(5): store(k, est)
            A("    s_endpgm")
            A("L_late:")
        if fence == "dummy" and fence_at == 5:
            A("    global_load_dword v%d, v%d, s[6:7]" % (VD, VC))
        if fence in ("dummy", "early", "postbar"): A("    s_waitcnt vmcnt(0)")
        elif fence == "barrier": A("    s_barrier")
        elif fence == "role":
            A("    s_cbranch_scc0 L_young2")
            A("    s_barrier")
            A("L_young2:")
        ST(5)
        if st2:
            A("    s_cmp_ge_u32 s13, %d" % (split * 64))
            A("    s_cbranch_scc1 L_st2")
        for k in range(5): store(k)
        if st2:
            A("    s_endpgm")
            A("L_st2:")
            for k in range(5): store(k, st2)
    if probe == 7:
        A("    s_waitcnt vmcnt(0)")
        ST(7)
    if stamp:
        ST(6)
        A("    s_waitcnt vmcnt(0)")
        ST(7)
        A("    s_getreg_b32 s36, hwreg(HW_REG_XCC_ID)")
        A("    s_getreg_b32 s37, hwreg(HW_REG_HW_ID)")
        A("    s_waitcnt lgkmcnt(0)")
        A("    v_lshrrev_b32 v8, 6, v%d" % nv)
        A("    s_mul_i32 s3, s2, %d" % waves)
        A("    v_add_u32 v8, s3, v8")
        A("    v_lshlrev_b32 v8, 6, v8")
        for i in range(8):
            A("    v_mov_b32 v%d, s%d" % (12 + i, 20 + 2 * i))
        A("    v_mov_b32 v20, s36")
        A("    v_mov_b32 v21, s37")
        A("    v_and_b32 v7, 63, v%d" % nv)
        A("    v_cmp_eq_u32 vcc, 0, v7")
        A("    s_and_saveexec_b64 s[14:15], vcc")
        A("    global_store_dwordx4 v8, v[12:15], s[16:17]")
        A("    global_store_dwordx4 v8, v[16:19], s[16:17] offset:16")
        A("    global_store_dwordx2 v8, v[20:21], s[16:17] offset:32")
        nv += 1
    if probe is not None:
        A("    s_waitcnt vmcnt(0) lgkmcnt(0)")
        A("    s_add_u32 s40, s20, 600")
        A("L_spin0:")
        A("    s_sleep 4")
        A("    s_memrealtime s[42:43]")
        A("    s_waitcnt lgkmcnt(0)")
        A("    s_sub_u32 s44, s42, s40")
        A("    s_cmp_lt_i32 s44, 0")
        A("    s_cbranch_scc1 L_spin0")
        A("    s_not_b32 s40, s20")
        A("    v_mov_b32 v8, 0")
        A("    v_mov_b32 v9, s40")
        A("    v_cmp_eq_u32 vcc, 0, v0")
        A("    s_and_saveexec_b64 s[14:15], vcc")
        A("    s_cbranch_execz L_noat")
        A("    global_atomic_umax v8, v9, s[10:11] sc1")
        A("L_noat:")
        A("    s_mov_b64 exec, s[14:15]")
        A("    s_add_u32 s40, s20, 1500")
        A("L_spin1:")
        A("    s_sleep 4")
        A("    s_memrealtime s[42:43]")
        A("    s_waitcnt lgkmcnt(0)")
        A("    s_sub_u32 s44, s42, s40")
        A("    s_cmp_lt_i32 s44, 0")
        A("    s_cbranch_scc1 L_spin1")
        A("    global_load_dword v9, v8, s[10:11] sc0 sc1")
        A("    s_waitcnt vmcnt(0)")
        A("    v_readfirstlane_b32 s41, v9")
        A("    s_nop 3")
        A("    s_not_b32 s41, s41")
        A("    s_sub_u32 s45, s%d, s41" % (20 + 2 * probe))
        A("    s_max_i32 s45, s45, 0")
        A("    s_min_u32 s45, s45, 1000")
        A("    s_mul_i32 s45, s45, %d" % amp)
        if onx is not None:
            A("    s_getreg_b32 s47, hwreg(HW_REG_XCC_ID)")
            A("    s_and_b32 s47, s47, 15")
            A("    s_cmp_eq_u32 s47, %d" % onx)
            A("    s_cselect_b32 s45, s45, 0")
        A("    s_sub_u32 s46, s20, s41")
        A("    s_max_i32 s46, s46, 0")
        A("    s_min_u32 s46, s46, 1000")
        A("    s_sub_u32 s40, s20, s46")
        A("    s_add_u32 s40, s40, s45")
        A("    s_add_u32 s40, s40, 2000")
        A("L_spin2:")
        A("    s_sleep 1")
        A("    s_memrealtime s[42:43]")
        A("    s_waitcnt lgkmcnt(0)")
        A("    s_sub_u32 s44, s42, s40")
        A("    s_cmp_lt_i32 s44, 0")
        A("    s_cbranch_scc1 L_spin2")
    A("L_end:")
    A("    s_endpgm")
    body_end = len(L)
    if not kdin:
        A('.section .rodata,"a"')
        A(".p2align 6")
    A(".amdhsa_kernel %s_kernel" % NAME)
    A("  .amdhsa_next_free_vgpr %d" % nv)
    A("  .amdhsa_next_free_sgpr %d" % (48 if (stamp or probe is not None) else 16))
    A("  .amdhsa_accum_offset %d" % ((nv + 3) // 4 * 4))
    A("  .amdhsa_group_segment_fixed_size 0")
    A("  .amdhsa_kernarg_size 40")
    A("  .amdhsa_user_sgpr_count 2")
    A("  .amdhsa_user_sgpr_kernarg_segment_ptr 1")
    A("  .amdhsa_system_sgpr_workgroup_id_x 1")
    A("  .amdhsa_float_denorm_mode_32 3")
    A(".end_amdhsa_kernel")
    if kdin:
        kd = L[body_end:]
        del L[body_end:]
        i = L.index("@KD@")
        L[i:i + 1] = ["    s_branch L_afterkd", ".p2align 6"] + [".fill %d, 4, 0xbf800000" % (16 * (kdin - 1))] + kd + ["L_afterkd:"]
    else:
        L.remove("@KD@")
    return "\n".join(L) + "\n"

if __name__ == "__main__":
    out = sys.argv[1]
    kw = json.loads(sys.argv[2]) if len(sys.argv) > 2 else {}
    open(out, "w").write(gen(**kw))
```

```python
import sys, struct, json

NAME = "standalone__rmsnorm__sampling"
ROWB = 1280
def f32hex(x):
    return "0x%08x" % struct.unpack("<I", struct.pack("<f", x))[0]

def gen(e=1, nrecv=3, ldflag="nt", early=0, acc="sq", ex0=None, earlyk=0, probe=None, amp=10, hprio=0, rows=None):
    if rows is None: rows = [e if x < nrecv else 0 for x in range(7)]
    d = sum(rows)
    L = []
    A = L.append
    def I(ins, comment=None): A("    " + ins)
    def ST(i):
        if probe is not None and i in (0, probe): I("s_memrealtime s[%d:%d]" % (20 + 2 * i, 21 + 2 * i))
    A("; @launch grid=(256,1,1) block=(576,1,1) lds=2560")
    A('.amdgcn_target "amdgcn-amd-amdhsa--gfx950"')
    A(".text"); A(".globl %s_kernel" % NAME); A(".p2align 12"); A(".p2align 8")
    A(".type %s_kernel,@function" % NAME); A("%s_kernel:" % NAME)
    VC, VA, VG, VG2, VW2, VD, ONE = 1, 2, 3, 4, 5, 6, 7
    ACC, ACC2, SC = 8, 9, 10
    XB, GU, P, T = 12, 32, 72, 112
    NV = 120
    def loads():
        for k in range(5):
            r = XB + 4 * k
            I("global_load_dwordx4 v[%d:%d], v%d, s[4:5] offset:%d %s" % (r, r + 3, VA, 256 * k, ldflag))
    ST(0)
    I("s_load_dwordx8 s[4:11], s[0:1], 0")
    I("s_cmpk_ge_u32 s2, 256")
    I("s_cbranch_scc1 L_end")
    I("v_readfirstlane_b32 s13, v0")
    I("v_and_b32 v%d, 15, v0" % VC)
    I("v_lshlrev_b32 v%d, 4, v%d" % (VC, VC))
    I("s_and_b32 s14, s2, 7")
    I("s_lshr_b32 s15, s2, 3")
    lim = [32 - d] + [32 + r for r in rows]
    sta = [0] + [sum(rows[:i]) for i in range(7)]
    limtab = sum((l - 24) << (4 * i) for i, l in enumerate(lim))
    statab = sum(s << (4 * i) for i, s in enumerate(sta))
    I("s_lshl_b32 s16, s14, 2")
    I("s_lshr_b32 s17, 0x%x, s16" % limtab)
    I("s_and_b32 s17, s17, 15")
    I("s_add_u32 s17, s17, 24")
    I("v_lshrrev_b32 v%d, 4, v0" % VG)
    I("s_lshl_b32 s3, s14, 5")
    I("s_add_u32 s3, s3, s15")
    I("s_lshl_b32 s3, s3, 5")
    I("s_mov_b32 s12, 0xffff0000")
    I("v_mov_b32 v%d, 0" % ACC)
    I("v_mov_b32 v%d, 0" % ACC2)
    I("v_mov_b32 v%d, 0x3f803f80" % ONE)
    I("v_mul_u32_u24 v%d, %d, v%d" % (VA, ROWB, VG))
    I("s_cmpk_eq_u32 s13, 512")
    I("s_cbranch_scc1 L_touch")
    A("L_rows:")
    I("s_mulk_i32 s3, %d" % ROWB)
    I("v_add3_u32 v%d, v%d, v%d, s3" % (VA, VA, VC))
    I("s_cmp_lg_u32 s13, 0")
    I("s_cbranch_scc1 L_other")
    I("v_lshlrev_b32 v%d, 4, v0" % VG)
    I("v_lshlrev_b32 v%d, 2, v0" % VG2)
    I("v_and_b32 v%d, 0xf0, v%d" % (VW2, VG2))
    I("v_and_b32 v%d, 1, v0" % VD)
    I("v_lshl_add_u32 v%d, v%d, 3, v%d" % (VW2, VD, VW2))
    I("v_bfe_u32 v%d, v0, 1, 1" % VD)
    I("v_mul_u32_u24 v%d, 1280, v%d" % (VD, VD))
    I("v_add_u32 v%d, v%d, v%d" % (VW2, VD, VW2))
    I("s_waitcnt lgkmcnt(0)")
    ST(1)
    I("global_load_dwordx4 v[%d:%d], v%d, s[6:7]" % (P, P + 3, VG))
    I("global_load_dword v%d, v%d, s[6:7] offset:1024" % (P + 4, VG2))
    loads()
    I("s_waitcnt vmcnt(5)")
    for j in range(5):
        I("v_lshlrev_b32 v%d, 16, v%d" % (GU + 2 * j, P + j))
        I("v_and_b32 v%d, s12, v%d" % (GU + 2 * j + 1, P + j))
    I("ds_write_b128 v%d, v[%d:%d]" % (VG, GU, GU + 3))
    I("ds_write_b128 v%d, v[%d:%d] offset:1280" % (VG, GU + 4, GU + 7))
    I("ds_write_b64 v%d, v[%d:%d] offset:1024" % (VW2, GU + 8, GU + 9))
    I("s_waitcnt lgkmcnt(0)")
    I("s_branch L_join")
    A("L_back:")
    if hprio: I("s_setprio %d" % hprio)
    I("s_lshr_b32 s3, 0x%x, s16" % statab)
    I("s_and_b32 s3, s3, 15")
    I("s_lshl_b32 s15, s15, 5")
    I("s_add_u32 s3, s3, s15")
    I("s_sub_u32 s3, s3, %d" % d)
    I("s_branch L_rows")
    A("L_other:")
    I("v_cmp_gt_u32 vcc, s17, v%d" % VG)
    I("s_and_b64 exec, exec, vcc")
    I("s_cbranch_execz L_end")
    I("s_waitcnt lgkmcnt(0)")
    ST(1)
    loads()
    A("L_join:")
    I("s_barrier")
    I("global_load_dword v%d, v%d, s[6:7]" % (VD, VC))
    for k in range(5):
        for h in range(2):
            r = GU + 8 * k + 4 * h
            I("ds_read_b128 v[%d:%d], v%d offset:%d" % (r, r + 3, VC, 1280 * h + 256 * k))
    I("s_cmp_eq_u32 s13, 1")
    def gmul(k):
        out = []
        for j in range(4):
            p = P + 8 * k + 2 * j
            g = GU + 8 * k + 2 * j
            out.append("v_pk_mul_f32 v[%d:%d], v[%d:%d], v[%d:%d]" % (p, p + 1, p, p + 1, g, g + 1))
        return out
    pw = []
    for k in range(5):
        if (acc == "sq" and k == 3) or (acc == "plain" and k == 2):
            A("L_touch:")
            I("s_cbranch_scc1 L_back")
        I("s_waitcnt vmcnt(%d)" % (5 - k))
        if k == 4: ST(4)
        if acc == "plain":
            r = XB + 4 * k
            for j in range(4):
                I("v_dot2c_f32_bf16 v%d, v%d, v%d" % (ACC if j % 2 == 0 else ACC2, r + j, r + j))
            rest = []
            for j in range(4):
                p = P + 8 * k + 2 * j
                rest.append("v_lshlrev_b32 v%d, 16, v%d" % (p, r + j))
                rest.append("v_and_b32 v%d, s12, v%d" % (p + 1, r + j))
            if k == 0: rest.append("s_waitcnt lgkmcnt(0)")
            rest += gmul(k)
            if k < 4:
                for x in rest: I(x)
            else: pw += rest
            continue
        r = XB + 4 * k
        for j in range(4):
            p = P + 8 * k + 2 * j
            I("v_lshlrev_b32 v%d, 16, v%d" % (p, r + j))
            I("v_and_b32 v%d, s12, v%d" % (p + 1, r + j))
        for j in range(4):
            p = P + 8 * k + 2 * j
            I("v_pk_mul_f32 v[%d:%d], v[%d:%d], v[%d:%d]" % (T + 2 * j, T + 2 * j + 1, p, p + 1, p, p + 1))
        if acc == "full" and k == 4:
            A("L_touch:")
            I("s_cbranch_scc1 L_back")
        for j in range(4):
            I("v_cvt_pk_bf16_f32 v%d, v%d, v%d" % (T + j, T + 2 * j, T + 2 * j + 1))
        for j in range(4):
            I("v_dot2c_f32_bf16 v%d, v%d, v%d" % (ACC if j % 2 == 0 else ACC2, T + j, ONE))
        if acc == "sq":
            if k == 0: I("s_waitcnt lgkmcnt(0)")
            if k < 3:
                for x in gmul(k): I(x)
            else: pw += gmul(k)
    def fill(n):
        while n > 0:
            if pw: I(pw.pop(0)); n -= 1
            else: I("s_nop %d" % (n - 1)); n = 0
    fill(3)
    I("v_add_f32 v%d, v%d, v%d" % (ACC, ACC, ACC2))
    for m in ["quad_perm:[1,0,3,2]", "quad_perm:[2,3,0,1]", "row_half_mirror", "row_mirror"]:
        fill(2)
        I("v_add_f32_dpp v%d, v%d, v%d %s row_mask:0xf bank_mask:0xf" % (ACC, ACC, ACC, m))
    if acc == "plain":
        I("v_mov_b32 v%d, %s" % (ACC2, f32hex(1e-6)))
        I("v_fmac_f32 v%d, %s, v%d" % (ACC2, f32hex(1.0 / 640), ACC))
        I("v_rsq_f32 v%d, v%d" % (SC, ACC2))
        fill(len(pw))
    else:
        I("v_mul_f32 v%d, %s, v%d" % (ACC, f32hex(1.0 / 640), ACC))
        I("v_cvt_pk_bf16_f32 v%d, 0, v%d" % (ACC, ACC))
        I("v_add_f32 v%d, %s, v%d" % (ACC, f32hex(1e-6), ACC))
        I("v_cvt_pk_bf16_f32 v%d, 0, v%d" % (ACC, ACC))
        I("v_sqrt_f32 v%d, v%d" % (ACC, ACC))
        I("s_nop 0")
        I("v_cvt_pk_bf16_f32 v%d, 0, v%d" % (ACC, ACC))
        I("v_rcp_f32 v%d, v%d" % (SC, ACC))
    I("s_waitcnt lgkmcnt(0)")
    for k in range(5):
        r = XB + 4 * k
        for j in range(4):
            p = P + 8 * k + 2 * j
            I("v_pk_mul_f32 v[%d:%d], v[%d:%d], v[%d:%d] op_sel_hi:[1,0]" % (p, p + 1, p, p + 1, SC, SC + 1))
        if acc == "full":
            for j in range(8):
                p = P + 8 * k + j
                I("v_cvt_pk_bf16_f32 v%d, 0, v%d" % (p, p))
            for x in gmul(k): I(x)
        for j in range(4):
            p = P + 8 * k + 2 * j
            I("v_cvt_pk_bf16_f32 v%d, v%d, v%d" % (r + j, p, p + 1))
    def store(k):
        r = XB + 4 * k
        I("global_store_dwordx4 v%d, v[%d:%d], s[8:9] offset:%d nt" % (VA, r, r + 3, 256 * k))
    for k in range(earlyk): store(k)
    if early:
        I("s_cmpk_lt_u32 s13, %d" % (early * 64))
        I("s_cbranch_scc1 L_st")
    I("s_waitcnt vmcnt(%d)" % earlyk)
    A("L_st:")
    for k in range(earlyk, 5): store(k)
    if probe is not None:
        I("s_waitcnt vmcnt(0)")
        ST(7)
        I("s_waitcnt vmcnt(0) lgkmcnt(0)")
        I("s_add_u32 s40, s20, 600")
        def spin(n, sl):
            A("L_spin%d:" % n)
            I("s_sleep %d" % sl); I("s_memrealtime s[42:43]"); I("s_waitcnt lgkmcnt(0)")
            I("s_sub_u32 s44, s42, s40"); I("s_cmp_lt_i32 s44, 0"); I("s_cbranch_scc1 L_spin%d" % n)
        spin(0, 4)
        I("s_not_b32 s40, s20")
        I("s_mov_b64 exec, 1")
        I("v_mov_b32 v8, 0")
        I("v_mov_b32 v9, s40")
        I("s_cmpk_lg_u32 s13, 64")
        I("s_cbranch_scc1 L_noat")
        I("global_atomic_umax v8, v9, s[10:11] sc1")
        A("L_noat:")
        I("s_add_u32 s40, s20, 1500")
        spin(1, 4)
        I("global_load_dword v9, v8, s[10:11] sc0 sc1")
        I("s_waitcnt vmcnt(0)")
        I("v_readfirstlane_b32 s41, v9")
        I("s_nop 3")
        I("s_not_b32 s41, s41")
        I("s_sub_u32 s45, s%d, s41" % (20 + 2 * probe))
        I("s_max_i32 s45, s45, 0"); I("s_min_u32 s45, s45, 1000"); I("s_mul_i32 s45, s45, %d" % amp)
        I("s_sub_u32 s46, s20, s41"); I("s_max_i32 s46, s46, 0"); I("s_min_u32 s46, s46, 1000")
        I("s_sub_u32 s40, s20, s46"); I("s_add_u32 s40, s40, s45"); I("s_add_u32 s40, s40, 2000")
        spin(2, 1)
    A("L_end:")
    I("s_endpgm")
    A('.section .rodata,"a"'); A(".p2align 6")
    A(".amdhsa_kernel %s_kernel" % NAME)
    A("  .amdhsa_next_free_vgpr %d" % NV)
    A("  .amdhsa_next_free_sgpr %d" % (48 if probe is not None else 18))
    A("  .amdhsa_accum_offset %d" % NV)
    A("  .amdhsa_group_segment_fixed_size 0"); A("  .amdhsa_kernarg_size 40"); A("  .amdhsa_user_sgpr_count 2")
    A("  .amdhsa_user_sgpr_kernarg_segment_ptr 1"); A("  .amdhsa_system_sgpr_workgroup_id_x 1")
    A("  .amdhsa_float_denorm_mode_32 3")
    A(".end_amdhsa_kernel")
    return "\n".join(L) + "\n"

if __name__ == "__main__":
    kw = json.loads(sys.argv[2]) if len(sys.argv) > 2 else {}
    open(sys.argv[1], "w").write(gen(**kw))
```

```python
import sys, struct, json

NAME = "standalone__rmsnorm__sampling"
ROWB = 1280
def f32hex(x):
    return "0x%08x" % struct.unpack("<I", struct.pack("<f", x))[0]

def gen(e=1, nrecv=3, ldflag="nt", early=0, acc="sq", ex0=None, earlyk=0, probe=None, amp=10, hprio=0, rows=None, stamp=False, gw=0, ew=None):
    if rows is None: rows = [e if x < nrecv else 0 for x in range(7)]
    d = sum(rows)
    L = []
    A = L.append
    def I(ins, comment=None): A("    " + ins)
    def ST(i):
        if stamp or (probe is not None and i in (0, probe)): I("s_memrealtime s[%d:%d]" % (20 + 2 * i, 21 + 2 * i))
    A("; @launch grid=(256,1,1) block=(576,1,1) lds=2560")
    A('.amdgcn_target "amdgcn-amd-amdhsa--gfx950"')
    A(".text"); A(".globl %s_kernel" % NAME); A(".p2align 12"); A(".p2align 8")
    A(".type %s_kernel,@function" % NAME); A("%s_kernel:" % NAME)
    VC, VA, VG, VG2, VW2, VD, ONE = 1, 2, 3, 4, 5, 6, 7
    ACC, ACC2, SC = 8, 9, 10
    XB, GU, P, T = 12, 32, 72, 112
    NV = 120
    def loads():
        for k in range(5):
            r = XB + 4 * k
            I("global_load_dwordx4 v[%d:%d], v%d, s[4:5] offset:%d %s" % (r, r + 3, VA, 256 * k, ldflag))
    ST(0)
    if stamp: I("s_load_dwordx2 s[18:19], s[0:1], 32")
    I("s_load_dwordx8 s[4:11], s[0:1], 0")
    I("s_cmpk_ge_u32 s2, 256")
    I("s_cbranch_scc1 L_end")
    I("v_readfirstlane_b32 s13, v0")
    I("v_and_b32 v%d, 15, v0" % VC)
    I("v_lshlrev_b32 v%d, 4, v%d" % (VC, VC))
    I("s_and_b32 s14, s2, 7")
    I("s_lshr_b32 s15, s2, 3")
    lim = [32 - d] + [32 + r for r in rows]
    sta = [0] + [sum(rows[:i]) for i in range(7)]
    limtab = sum((l - 24) << (4 * i) for i, l in enumerate(lim))
    statab = sum(s << (4 * i) for i, s in enumerate(sta))
    I("s_lshl_b32 s16, s14, 2")
    I("s_lshr_b32 s17, 0x%x, s16" % limtab)
    I("s_and_b32 s17, s17, 15")
    I("s_add_u32 s17, s17, 24")
    I("v_lshrrev_b32 v%d, 4, v0" % VG)
    I("s_lshl_b32 s3, s14, 5")
    I("s_add_u32 s3, s3, s15")
    I("s_lshl_b32 s3, s3, 5")
    I("s_mov_b32 s12, 0xffff0000")
    I("v_mov_b32 v%d, 0" % ACC)
    I("v_mov_b32 v%d, 0" % ACC2)
    I("v_mov_b32 v%d, 0x3f803f80" % ONE)
    I("v_mul_u32_u24 v%d, %d, v%d" % (VA, ROWB, VG))
    I("s_cmpk_eq_u32 s13, 512")
    I("s_cbranch_scc1 L_touch")
    A("L_rows:")
    I("s_mulk_i32 s3, %d" % ROWB)
    I("v_add3_u32 v%d, v%d, v%d, s3" % (VA, VA, VC))
    I("s_cmpk_lg_u32 s13, %d" % (gw * 64))
    I("s_cbranch_scc1 L_other")
    if gw: I("v_and_b32 v0, 63, v0")
    I("v_lshlrev_b32 v%d, 4, v0" % VG)
    I("v_lshlrev_b32 v%d, 2, v0" % VG2)
    I("v_and_b32 v%d, 0xf0, v%d" % (VW2, VG2))
    I("v_and_b32 v%d, 1, v0" % VD)
    I("v_lshl_add_u32 v%d, v%d, 3, v%d" % (VW2, VD, VW2))
    I("v_bfe_u32 v%d, v0, 1, 1" % VD)
    I("v_mul_u32_u24 v%d, 1280, v%d" % (VD, VD))
    I("v_add_u32 v%d, v%d, v%d" % (VW2, VD, VW2))
    I("s_waitcnt lgkmcnt(0)")
    ST(1)
    I("global_load_dwordx4 v[%d:%d], v%d, s[6:7]" % (P, P + 3, VG))
    I("global_load_dword v%d, v%d, s[6:7] offset:1024" % (P + 4, VG2))
    loads()
    I("s_waitcnt vmcnt(5)")
    for j in range(5):
        I("v_lshlrev_b32 v%d, 16, v%d" % (GU + 2 * j, P + j))
        I("v_and_b32 v%d, s12, v%d" % (GU + 2 * j + 1, P + j))
    I("ds_write_b128 v%d, v[%d:%d]" % (VG, GU, GU + 3))
    I("ds_write_b128 v%d, v[%d:%d] offset:1280" % (VG, GU + 4, GU + 7))
    I("ds_write_b64 v%d, v[%d:%d] offset:1024" % (VW2, GU + 8, GU + 9))
    I("s_waitcnt lgkmcnt(0)")
    I("s_branch L_join")
    A("L_back:")
    if hprio: I("s_setprio %d" % hprio)
    I("s_lshr_b32 s3, 0x%x, s16" % statab)
    I("s_and_b32 s3, s3, 15")
    I("s_lshl_b32 s15, s15, 5")
    I("s_add_u32 s3, s3, s15")
    I("s_sub_u32 s3, s3, %d" % d)
    I("s_branch L_rows")
    A("L_other:")
    I("v_cmp_gt_u32 vcc, s17, v%d" % VG)
    I("s_and_b64 exec, exec, vcc")
    I("s_cbranch_execz L_end")
    I("s_waitcnt lgkmcnt(0)")
    ST(1)
    loads()
    A("L_join:")
    I("s_barrier")
    ST(2)
    I("global_load_dword v%d, v%d, s[6:7]" % (VD, VC))
    for k in range(5):
        for h in range(2):
            r = GU + 8 * k + 4 * h
            I("ds_read_b128 v[%d:%d], v%d offset:%d" % (r, r + 3, VC, 1280 * h + 256 * k))
    I("s_cmp_eq_u32 s13, 1")
    def gmul(k):
        out = []
        for j in range(4):
            p = P + 8 * k + 2 * j
            g = GU + 8 * k + 2 * j
            out.append("v_pk_mul_f32 v[%d:%d], v[%d:%d], v[%d:%d]" % (p, p + 1, p, p + 1, g, g + 1))
        return out
    pw = []
    for k in range(5):
        if (acc == "sq" and k == 3) or (acc == "plain" and k == 2):
            A("L_touch:")
            I("s_cbranch_scc1 L_back")
        I("s_waitcnt vmcnt(%d)" % (5 - k))
        if k == 0: ST(3)
        if k == 4: ST(4)
        if acc == "plain":
            r = XB + 4 * k
            for j in range(4):
                I("v_dot2c_f32_bf16 v%d, v%d, v%d" % (ACC if j % 2 == 0 else ACC2, r + j, r + j))
            rest = []
            for j in range(4):
                p = P + 8 * k + 2 * j
                rest.append("v_lshlrev_b32 v%d, 16, v%d" % (p, r + j))
                rest.append("v_and_b32 v%d, s12, v%d" % (p + 1, r + j))
            if k == 0: rest.append("s_waitcnt lgkmcnt(0)")
            rest += gmul(k)
            if k < 4:
                for x in rest: I(x)
            else: pw += rest
            continue
        r = XB + 4 * k
        for j in range(4):
            p = P + 8 * k + 2 * j
            I("v_lshlrev_b32 v%d, 16, v%d" % (p, r + j))
            I("v_and_b32 v%d, s12, v%d" % (p + 1, r + j))
        for j in range(4):
            p = P + 8 * k + 2 * j
            I("v_pk_mul_f32 v[%d:%d], v[%d:%d], v[%d:%d]" % (T + 2 * j, T + 2 * j + 1, p, p + 1, p, p + 1))
        if acc == "full" and k == 4:
            A("L_touch:")
            I("s_cbranch_scc1 L_back")
        for j in range(4):
            I("v_cvt_pk_bf16_f32 v%d, v%d, v%d" % (T + j, T + 2 * j, T + 2 * j + 1))
        for j in range(4):
            I("v_dot2c_f32_bf16 v%d, v%d, v%d" % (ACC if j % 2 == 0 else ACC2, T + j, ONE))
        if acc == "sq":
            if k == 0: I("s_waitcnt lgkmcnt(0)")
            if k < 3:
                for x in gmul(k): I(x)
            else: pw += gmul(k)
    def fill(n):
        while n > 0:
            if pw: I(pw.pop(0)); n -= 1
            else: I("s_nop %d" % (n - 1)); n = 0
    fill(3)
    I("v_add_f32 v%d, v%d, v%d" % (ACC, ACC, ACC2))
    for m in ["quad_perm:[1,0,3,2]", "quad_perm:[2,3,0,1]", "row_half_mirror", "row_mirror"]:
        fill(2)
        I("v_add_f32_dpp v%d, v%d, v%d %s row_mask:0xf bank_mask:0xf" % (ACC, ACC, ACC, m))
    if acc == "plain":
        I("v_mov_b32 v%d, %s" % (ACC2, f32hex(1e-6)))
        I("v_fmac_f32 v%d, %s, v%d" % (ACC2, f32hex(1.0 / 640), ACC))
        I("v_rsq_f32 v%d, v%d" % (SC, ACC2))
        fill(len(pw))
    else:
        I("v_mul_f32 v%d, %s, v%d" % (ACC, f32hex(1.0 / 640), ACC))
        I("v_cvt_pk_bf16_f32 v%d, 0, v%d" % (ACC, ACC))
        I("v_add_f32 v%d, %s, v%d" % (ACC, f32hex(1e-6), ACC))
        I("v_cvt_pk_bf16_f32 v%d, 0, v%d" % (ACC, ACC))
        I("v_sqrt_f32 v%d, v%d" % (ACC, ACC))
        I("s_nop 0")
        I("v_cvt_pk_bf16_f32 v%d, 0, v%d" % (ACC, ACC))
        I("v_rcp_f32 v%d, v%d" % (SC, ACC))
    I("s_waitcnt lgkmcnt(0)")
    for k in range(5):
        r = XB + 4 * k
        for j in range(4):
            p = P + 8 * k + 2 * j
            I("v_pk_mul_f32 v[%d:%d], v[%d:%d], v[%d:%d] op_sel_hi:[1,0]" % (p, p + 1, p, p + 1, SC, SC + 1))
        if acc == "full":
            for j in range(8):
                p = P + 8 * k + j
                I("v_cvt_pk_bf16_f32 v%d, 0, v%d" % (p, p))
            for x in gmul(k): I(x)
        for j in range(4):
            p = P + 8 * k + 2 * j
            I("v_cvt_pk_bf16_f32 v%d, v%d, v%d" % (r + j, p, p + 1))
    def store(k):
        r = XB + 4 * k
        I("global_store_dwordx4 v%d, v[%d:%d], s[8:9] offset:%d nt" % (VA, r, r + 3, 256 * k))
    ST(6)
    for k in range(earlyk): store(k)
    if ew is not None:
        I("s_lshr_b32 s16, s13, 6")
        I("s_bitcmp1_b32 0x%x, s16" % ew)
        I("s_cbranch_scc1 L_st")
    elif early:
        I("s_cmpk_lt_u32 s13, %d" % (early * 64))
        I("s_cbranch_scc1 L_st")
    I("s_waitcnt vmcnt(%d)" % earlyk)
    A("L_st:")
    ST(5)
    for k in range(earlyk, 5): store(k)
    if stamp:
        I("s_waitcnt vmcnt(0)")
        ST(7)
        I("s_getreg_b32 s36, hwreg(HW_REG_XCC_ID)")
        I("s_getreg_b32 s37, hwreg(HW_REG_HW_ID)")
        I("s_waitcnt lgkmcnt(0)")
        I("s_mul_i32 s3, s2, 576")
        I("s_add_u32 s3, s3, s13")
        I("v_mov_b32 v8, s3")
        for i in range(8): I("v_mov_b32 v%d, s%d" % (12 + i, 20 + 2 * i))
        I("v_mov_b32 v20, s36")
        I("v_mov_b32 v21, s37")
        I("v_mov_b32 v22, 0x600dcafe")
        I("v_mov_b32 v23, s13")
        I("s_mov_b64 exec, 1")
        I("global_store_dwordx4 v8, v[12:15], s[18:19]")
        I("global_store_dwordx4 v8, v[16:19], s[18:19] offset:16")
        I("global_store_dwordx4 v8, v[20:23], s[18:19] offset:32")
    if probe is not None:
        I("s_waitcnt vmcnt(0)")
        ST(7)
        I("s_waitcnt vmcnt(0) lgkmcnt(0)")
        I("s_add_u32 s40, s20, 600")
        def spin(n, sl):
            A("L_spin%d:" % n)
            I("s_sleep %d" % sl); I("s_memrealtime s[42:43]"); I("s_waitcnt lgkmcnt(0)")
            I("s_sub_u32 s44, s42, s40"); I("s_cmp_lt_i32 s44, 0"); I("s_cbranch_scc1 L_spin%d" % n)
        spin(0, 4)
        I("s_not_b32 s40, s20")
        I("s_mov_b64 exec, 1")
        I("v_mov_b32 v8, 0")
        I("v_mov_b32 v9, s40")
        I("s_cmpk_lg_u32 s13, 64")
        I("s_cbranch_scc1 L_noat")
        I("global_atomic_umax v8, v9, s[10:11] sc1")
        A("L_noat:")
        I("s_add_u32 s40, s20, 1500")
        spin(1, 4)
        I("global_load_dword v9, v8, s[10:11] sc0 sc1")
        I("s_waitcnt vmcnt(0)")
        I("v_readfirstlane_b32 s41, v9")
        I("s_nop 3")
        I("s_not_b32 s41, s41")
        I("s_sub_u32 s45, s%d, s41" % (20 + 2 * probe))
        I("s_max_i32 s45, s45, 0"); I("s_min_u32 s45, s45, 1000"); I("s_mul_i32 s45, s45, %d" % amp)
        I("s_sub_u32 s46, s20, s41"); I("s_max_i32 s46, s46, 0"); I("s_min_u32 s46, s46, 1000")
        I("s_sub_u32 s40, s20, s46"); I("s_add_u32 s40, s40, s45"); I("s_add_u32 s40, s40, 2000")
        spin(2, 1)
    A("L_end:")
    I("s_endpgm")
    A('.section .rodata,"a"'); A(".p2align 6")
    A(".amdhsa_kernel %s_kernel" % NAME)
    A("  .amdhsa_next_free_vgpr %d" % NV)
    A("  .amdhsa_next_free_sgpr %d" % (48 if (stamp or probe is not None) else 18))
    A("  .amdhsa_accum_offset %d" % NV)
    A("  .amdhsa_group_segment_fixed_size 0"); A("  .amdhsa_kernarg_size 40"); A("  .amdhsa_user_sgpr_count 2")
    A("  .amdhsa_user_sgpr_kernarg_segment_ptr 1"); A("  .amdhsa_system_sgpr_workgroup_id_x 1")
    A("  .amdhsa_float_denorm_mode_32 3")
    A(".end_amdhsa_kernel")
    return "\n".join(L) + "\n"

if __name__ == "__main__":
    kw = json.loads(sys.argv[2]) if len(sys.argv) > 2 else {}
    open(sys.argv[1], "w").write(gen(**kw))
```

```python
import sys, struct

NAME = "standalone__rmsnorm__sampling"
ROWB = 1280

def f32hex(x):
    return "0x%08x" % struct.unpack("<I", struct.pack("<f", x))[0]

L = []
A = L.append
def I(ins, comment=None):
    A("    %-62s; %s" % (ins, comment) if comment else "    " + ins)
def C(text):
    A("    ; " + text)

A("""; Kernarg layout for this problem (40 bytes, ptrs only, base s[0:1]):
; @launch grid=(256,1,1) block=(576,1,1) lds=2560
;
;
;
; wave when the CU's loads are done. This ordering affects speed only, never the result.""")
A('.amdgcn_target "amdgcn-amd-amdhsa--gfx950"')
A(".text")
A(".globl %s_kernel" % NAME)
A(".p2align 12      ; whole kernel inside one 4 KiB page: instruction prefetch stops at page ends")
A(".p2align 8")
A(".type %s_kernel,@function" % NAME)
A("%s_kernel:" % NAME)

VC, VA, VG, VG2, VW2, VD, ONE = 1, 2, 3, 4, 5, 6, 7
ACC, ACC2, SC = 8, 9, 10
XB, GU, P, T = 12, 32, 72, 112
NV = 120

def loads():
    for k in range(5):
        r = XB + 4 * k
        I("global_load_dwordx4 v[%d:%d], v%d, s[4:5] offset:%d nt" % (r, r + 3, VA, 256 * k))

I("s_load_dwordx8 s[4:11], s[0:1], 0", "s[4:5]=x  s[6:7]=g  s[8:9]=out")
I("s_cmpk_ge_u32 s2, 256", "workgroups past the data exit")
I("s_cbranch_scc1 L_end")
I("v_readfirstlane_b32 s13, v0", "s13 = wave id * 64")
I("v_and_b32 v%d, 15, v0" % VC)
I("v_lshlrev_b32 v%d, 4, v%d" % (VC, VC), "v1 = 16 * (lane in row): byte column of chunk 0")
I("s_and_b32 s14, s2, 7", "c")
I("s_lshr_b32 s15, s2, 3", "j")
I("s_lshl_b32 s16, s14, 2")
I("s_lshr_b32 s17, 0x88889995, s16", "row slots in use - 24, one nibble per c:")
I("s_and_b32 s17, s17, 15", "29, 33, 33, 33, 32, 32, 32, 32")
I("s_add_u32 s17, s17, 24")
I("v_lshrrev_b32 v%d, 4, v0" % VG, "v3 = row slot 0..35")
I("s_lshl_b32 s3, s14, 5")
I("s_add_u32 s3, s3, s15")
I("s_lshl_b32 s3, s3, 5", "s3 = row of slot 0 = (32c + j) * 32")
I("s_mov_b32 s12, 0xffff0000")
I("v_mov_b32 v%d, 0" % ACC)
I("v_mov_b32 v%d, 0" % ACC2)
I("v_mov_b32 v%d, 0x3f803f80" % ONE, "(1.0, 1.0) in bf16")
I("v_mul_u32_u24 v%d, %d, v%d" % (VA, ROWB, VG))
I("s_cmpk_eq_u32 s13, 512", "wave 8 goes through L_touch, so that the second half of the")
I("s_cbranch_scc1 L_touch", "code is fetched before the loads fill the memory queues")
A("L_rows:")
I("s_mulk_i32 s3, %d" % ROWB)
I("v_add3_u32 v%d, v%d, v%d, s3" % (VA, VA, VC), "v2 = byte offset of this lane's chunk 0 in x / out")
I("s_cmp_lg_u32 s13, 64")
I("s_cbranch_scc1 L_other")
C("---- wave 1: fetch g (lane l: bytes 16l..16l+15 and dword 256+l), widen, publish in LDS")
C("LDS image: f32 elements 0..3 of 8-element group n at 16n, elements 4..7 at 1280 + 16n")
I("v_and_b32 v0, 63, v0", "l")
I("v_lshlrev_b32 v%d, 4, v0" % VG)
I("v_lshlrev_b32 v%d, 2, v0" % VG2)
I("v_and_b32 v%d, 0xf0, v%d" % (VW2, VG2))
I("v_and_b32 v%d, 1, v0" % VD)
I("v_lshl_add_u32 v%d, v%d, 3, v%d" % (VW2, VD, VW2))
I("v_bfe_u32 v%d, v0, 1, 1" % VD)
I("v_mul_u32_u24 v%d, 1280, v%d" % (VD, VD))
I("v_add_u32 v%d, v%d, v%d" % (VW2, VD, VW2), "v5 = (l>>2)*16 + (l&1)*8 + ((l>>1)&1)*1280")
I("s_waitcnt lgkmcnt(0)")
I("global_load_dwordx4 v[%d:%d], v%d, s[6:7]" % (P, P + 3, VG))
I("global_load_dword v%d, v%d, s[6:7] offset:1024" % (P + 4, VG2))
loads()
I("s_waitcnt vmcnt(5)")
for j in range(5):
    I("v_lshlrev_b32 v%d, 16, v%d" % (GU + 2 * j, P + j))
    I("v_and_b32 v%d, s12, v%d" % (GU + 2 * j + 1, P + j))
I("ds_write_b128 v%d, v[%d:%d]" % (VG, GU, GU + 3))
I("ds_write_b128 v%d, v[%d:%d] offset:1280" % (VG, GU + 4, GU + 7))
I("ds_write_b64 v%d, v[%d:%d] offset:1024" % (VW2, GU + 8, GU + 9))
I("s_waitcnt lgkmcnt(0)")
I("s_branch L_join")
A("L_wave8:")
C("---- wave 8: slot 32 is row 32j + 28 + c, i.e. slot 0 would be row 32j + c - 4")
I("s_lshl_b32 s3, s15, 5")
I("s_add_u32 s3, s3, s14")
I("s_sub_u32 s3, s3, 4", "may wrap below 0; the slot term brings the sum back (mod 2^32)")
I("s_branch L_rows")
A("L_other:")
I("v_cmp_gt_u32 vcc, s17, v%d" % VG, "keep the lanes whose slot is in use")
I("s_and_b64 exec, exec, vcc")
I("s_cbranch_execz L_end")
I("s_waitcnt lgkmcnt(0)")
loads()
A("L_join:")
I("s_barrier", "g is in LDS; every remaining wave has issued its x loads")
I("global_load_dword v%d, v%d, s[6:7]" % (VD, VC), "returns after all of them (value unused)")
for k in range(5):
    for h in range(2):
        r = GU + 8 * k + 4 * h
        I("ds_read_b128 v[%d:%d], v%d offset:%d" % (r, r + 3, VC, 1280 * h + 256 * k))
I("s_cmp_eq_u32 s13, 1", "SCC = 0 up to L_touch (s13 is a multiple of 64)")
def gmul(k):
    return ["v_pk_mul_f32 v[%d:%d], v[%d:%d], v[%d:%d]" % (P + 8 * k + 2 * j, P + 8 * k + 2 * j + 1, P + 8 * k + 2 * j,
            P + 8 * k + 2 * j + 1, GU + 8 * k + 2 * j, GU + 8 * k + 2 * j + 1) for j in range(4)]
pw = []
for k in range(5):
    if k == 3:
        A("L_touch:")
        I("s_cbranch_scc1 L_wave8", "taken only on wave 8's early visit")
    C("---- chunk %d: widen to f32; square, round to bf16, accumulate in f32; x * g" % k)
    I("s_waitcnt vmcnt(%d)" % (5 - k))
    r = XB + 4 * k
    for j in range(4):
        p = P + 8 * k + 2 * j
        I("v_lshlrev_b32 v%d, 16, v%d" % (p, r + j))
        I("v_and_b32 v%d, s12, v%d" % (p + 1, r + j))
    for j in range(4):
        p = P + 8 * k + 2 * j
        I("v_pk_mul_f32 v[%d:%d], v[%d:%d], v[%d:%d]" % (T + 2 * j, T + 2 * j + 1, p, p + 1, p, p + 1))
    for j in range(4):
        I("v_cvt_pk_bf16_f32 v%d, v%d, v%d" % (T + j, T + 2 * j, T + 2 * j + 1))
    for j in range(4):
        I("v_dot2c_f32_bf16 v%d, v%d, v%d" % (ACC if j % 2 == 0 else ACC2, T + j, ONE))
    if k == 0: I("s_waitcnt lgkmcnt(0)", "g registers loaded")
    if k < 3:
        for x in gmul(k): I(x)
    else:
        pw += gmul(k)
def fill(n):
    while n > 0:
        if pw: I(pw.pop(0)); n -= 1
        else: I("s_nop %d" % (n - 1)); n = 0
C("---- row sum over the row's 16 lanes; the x * g of chunks 3, 4 fill the wait states")
C("(3 after the last dot, 2 before each DPP read)")
fill(3)
I("v_add_f32 v%d, v%d, v%d" % (ACC, ACC, ACC2))
for m in ["quad_perm:[1,0,3,2]", "quad_perm:[2,3,0,1]", "row_half_mirror", "row_mirror"]:
    fill(2)
    I("v_add_f32_dpp v%d, v%d, v%d %s row_mask:0xf bank_mask:0xf" % (ACC, ACC, ACC, m))
assert not pw
C("---- rms = bf16(sqrt(bf16(bf16(sum / 640) + 1e-6))); cvt_pk(0, v) leaves bf16(v) as an f32")
I("v_mul_f32 v%d, %s, v%d" % (ACC, f32hex(1.0 / 640), ACC))
I("v_cvt_pk_bf16_f32 v%d, 0, v%d" % (ACC, ACC))
I("v_add_f32 v%d, %s, v%d" % (ACC, f32hex(1e-6), ACC))
I("v_cvt_pk_bf16_f32 v%d, 0, v%d" % (ACC, ACC))
I("v_sqrt_f32 v%d, v%d" % (ACC, ACC))
I("s_nop 0")
I("v_cvt_pk_bf16_f32 v%d, 0, v%d" % (ACC, ACC))
I("v_rcp_f32 v%d, v%d" % (SC, ACC), "v10 = 1 / rms")
I("s_cmp_eq_u32 s13, 0", "SCC = wave 0 (also the wait state after v_rcp)")
C("---- out = bf16(x * g / rms)")
for k in range(5):
    r = XB + 4 * k
    for j in range(4):
        p = P + 8 * k + 2 * j
        I("v_pk_mul_f32 v[%d:%d], v[%d:%d], v[%d:%d] op_sel_hi:[1,0]" % (p, p + 1, p, p + 1, SC, SC + 1))
    for j in range(4):
        p = P + 8 * k + 2 * j
        I("v_cvt_pk_bf16_f32 v%d, v%d, v%d" % (r + j, p, p + 1))
I("s_cbranch_scc1 L_store")
I("s_waitcnt vmcnt(0)", "this CU's read phase is over")
A("L_store:")
for k in range(5):
    r = XB + 4 * k
    I("global_store_dwordx4 v%d, v[%d:%d], s[8:9] offset:%d nt" % (VA, r, r + 3, 256 * k))
A("L_end:")
I("s_endpgm")
A('.section .rodata,"a"')
A(".p2align 6")
A(".amdhsa_kernel %s_kernel" % NAME)
A("  .amdhsa_next_free_vgpr %d" % NV)
A("  .amdhsa_next_free_sgpr 18")
A("  .amdhsa_accum_offset %d" % NV)
A("  .amdhsa_group_segment_fixed_size 0")
A("  .amdhsa_kernarg_size 40")
A("  .amdhsa_user_sgpr_count 2")
A("  .amdhsa_user_sgpr_kernarg_segment_ptr 1")
A("  .amdhsa_system_sgpr_workgroup_id_x 1")
A("  .amdhsa_float_denorm_mode_32 3")
A(".end_amdhsa_kernel")
open(sys.argv[1], "w").write("\n".join(L) + "\n")
```

```python
import sys, struct

NAME = "standalone__rmsnorm__sampling"
ROWB = 1280

def f32hex(x):
    return "0x%08x" % struct.unpack("<I", struct.pack("<f", x))[0]

L = []
A = L.append
def I(ins, comment=None):
    A("    %-62s; %s" % (ins, comment) if comment else "    " + ins)
def C(text):
    A("    ; " + text)

A("""; Kernarg layout for this problem (40 bytes, ptrs only, base s[0:1]):
; @launch grid=(256,1,1) block=(576,1,1) lds=2560
;
;
;
; wave when the CU's loads are done. This ordering affects speed only, never the result.""")
A('.amdgcn_target "amdgcn-amd-amdhsa--gfx950"')
A(".text")
A(".globl %s_kernel" % NAME)
A(".p2align 12      ; whole kernel inside one 4 KiB page: instruction prefetch stops at page ends")
A(".p2align 8")
A(".type %s_kernel,@function" % NAME)
A("%s_kernel:" % NAME)

VC, VA, VG, VG2, VW2, VD, ONE = 1, 2, 3, 4, 5, 6, 7
ACC, ACC2, SC = 8, 9, 10
XB, GU, P, T = 12, 32, 72, 112
NV = 120

def loads():
    for k in range(5):
        r = XB + 4 * k
        I("global_load_dwordx4 v[%d:%d], v%d, s[4:5] offset:%d nt" % (r, r + 3, VA, 256 * k))

I("s_load_dwordx8 s[4:11], s[0:1], 0", "s[4:5]=x  s[6:7]=g  s[8:9]=out")
I("s_cmpk_ge_u32 s2, 256", "workgroups past the data exit")
I("s_cbranch_scc1 L_end")
I("v_readfirstlane_b32 s13, v0", "s13 = wave id * 64")
I("v_and_b32 v%d, 15, v0" % VC)
I("v_lshlrev_b32 v%d, 4, v%d" % (VC, VC), "v1 = 16 * (lane in row): byte column of chunk 0")
I("s_and_b32 s14, s2, 7", "c")
I("s_lshr_b32 s15, s2, 3", "j")
I("s_lshl_b32 s16, s14, 2")
I("s_lshr_b32 s17, 0x88889995, s16", "row slots in use - 24, one nibble per c:")
I("s_and_b32 s17, s17, 15", "29, 33, 33, 33, 32, 32, 32, 32")
I("s_add_u32 s17, s17, 24")
I("v_lshrrev_b32 v%d, 4, v0" % VG, "v3 = row slot 0..35")
I("s_lshl_b32 s3, s14, 5")
I("s_add_u32 s3, s3, s15")
I("s_lshl_b32 s3, s3, 5", "s3 = row of slot 0 = (32c + j) * 32")
I("s_mov_b32 s12, 0xffff0000")
I("v_mov_b32 v%d, 0" % ACC)
I("v_mov_b32 v%d, 0" % ACC2)
I("v_mov_b32 v%d, 0x3f803f80" % ONE, "(1.0, 1.0) in bf16")
I("v_mul_u32_u24 v%d, %d, v%d" % (VA, ROWB, VG))
I("s_cmpk_eq_u32 s13, 512", "wave 8 goes through L_touch, so that the second half of the")
I("s_cbranch_scc1 L_touch", "code is fetched before the loads fill the memory queues")
A("L_rows:")
I("s_mulk_i32 s3, %d" % ROWB)
I("v_add3_u32 v%d, v%d, v%d, s3" % (VA, VA, VC), "v2 = byte offset of this lane's chunk 0 in x / out")
I("s_cmp_lg_u32 s13, 64")
I("s_cbranch_scc1 L_other")
C("---- wave 1: fetch g (lane l: bytes 16l..16l+15 and dword 256+l), widen, publish in LDS")
C("LDS image: f32 elements 0..3 of 8-element group n at 16n, elements 4..7 at 1280 + 16n")
I("v_and_b32 v0, 63, v0", "l")
I("v_lshlrev_b32 v%d, 4, v0" % VG)
I("v_lshlrev_b32 v%d, 2, v0" % VG2)
I("v_and_b32 v%d, 0xf0, v%d" % (VW2, VG2))
I("v_and_b32 v%d, 1, v0" % VD)
I("v_lshl_add_u32 v%d, v%d, 3, v%d" % (VW2, VD, VW2))
I("v_bfe_u32 v%d, v0, 1, 1" % VD)
I("v_mul_u32_u24 v%d, 1280, v%d" % (VD, VD))
I("v_add_u32 v%d, v%d, v%d" % (VW2, VD, VW2), "v5 = (l>>2)*16 + (l&1)*8 + ((l>>1)&1)*1280")
I("s_waitcnt lgkmcnt(0)")
I("global_load_dwordx4 v[%d:%d], v%d, s[6:7]" % (P, P + 3, VG))
I("global_load_dword v%d, v%d, s[6:7] offset:1024" % (P + 4, VG2))
loads()
I("s_waitcnt vmcnt(5)")
for j in range(5):
    I("v_lshlrev_b32 v%d, 16, v%d" % (GU + 2 * j, P + j))
    I("v_and_b32 v%d, s12, v%d" % (GU + 2 * j + 1, P + j))
I("ds_write_b128 v%d, v[%d:%d]" % (VG, GU, GU + 3))
I("ds_write_b128 v%d, v[%d:%d] offset:1280" % (VG, GU + 4, GU + 7))
I("ds_write_b64 v%d, v[%d:%d] offset:1024" % (VW2, GU + 8, GU + 9))
I("s_waitcnt lgkmcnt(0)")
I("s_branch L_join")
A("L_wave8:")
C("---- wave 8: slot 32 is row 32j + 28 + c, i.e. slot 0 would be row 32j + c - 4")
I("s_lshl_b32 s3, s15, 5")
I("s_add_u32 s3, s3, s14")
I("s_sub_u32 s3, s3, 4", "may wrap below 0; the slot term brings the sum back (mod 2^32)")
I("s_branch L_rows")
A("L_other:")
I("v_cmp_gt_u32 vcc, s17, v%d" % VG, "keep the lanes whose slot is in use")
I("s_and_b64 exec, exec, vcc")
I("s_cbranch_execz L_end")
I("s_waitcnt lgkmcnt(0)")
loads()
A("L_join:")
I("s_barrier", "g is in LDS; every remaining wave has issued its x loads")
I("global_load_dword v%d, v%d, s[6:7]" % (VD, VC), "returns after all of them (value unused)")
for k in range(5):
    for h in range(2):
        r = GU + 8 * k + 4 * h
        I("ds_read_b128 v[%d:%d], v%d offset:%d" % (r, r + 3, VC, 1280 * h + 256 * k))
I("s_cmp_eq_u32 s13, 1", "SCC = 0 up to L_touch (s13 is a multiple of 64)")
def gmul(k):
    return ["v_pk_mul_f32 v[%d:%d], v[%d:%d], v[%d:%d]" % (P + 8 * k + 2 * j, P + 8 * k + 2 * j + 1, P + 8 * k + 2 * j,
            P + 8 * k + 2 * j + 1, GU + 8 * k + 2 * j, GU + 8 * k + 2 * j + 1) for j in range(4)]
pw = []
for k in range(5):
    if k == 3:
        A("L_touch:")
        I("s_cbranch_scc1 L_wave8", "taken only on wave 8's early visit")
    C("---- chunk %d: widen to f32; square, round to bf16, accumulate in f32; x * g" % k)
    I("s_waitcnt vmcnt(%d)" % (5 - k))
    r = XB + 4 * k
    for j in range(4):
        p = P + 8 * k + 2 * j
        I("v_lshlrev_b32 v%d, 16, v%d" % (p, r + j))
        I("v_and_b32 v%d, s12, v%d" % (p + 1, r + j))
    for j in range(4):
        p = P + 8 * k + 2 * j
        I("v_pk_mul_f32 v[%d:%d], v[%d:%d], v[%d:%d]" % (T + 2 * j, T + 2 * j + 1, p, p + 1, p, p + 1))
    for j in range(4):
        I("v_cvt_pk_bf16_f32 v%d, v%d, v%d" % (T + j, T + 2 * j, T + 2 * j + 1))
    for j in range(4):
        I("v_dot2c_f32_bf16 v%d, v%d, v%d" % (ACC if j % 2 == 0 else ACC2, T + j, ONE))
    if k == 0: I("s_waitcnt lgkmcnt(0)", "g registers loaded")
    if k < 3:
        for x in gmul(k): I(x)
    else:
        pw += gmul(k)
def fill(n):
    while n > 0:
        if pw: I(pw.pop(0)); n -= 1
        else: I("s_nop %d" % (n - 1)); n = 0
C("---- row sum over the row's 16 lanes; the x * g of chunks 3, 4 fill the wait states")
C("(3 after the last dot, 2 before each DPP read)")
fill(3)
I("v_add_f32 v%d, v%d, v%d" % (ACC, ACC, ACC2))
for m in ["quad_perm:[1,0,3,2]", "quad_perm:[2,3,0,1]", "row_half_mirror", "row_mirror"]:
    fill(2)
    I("v_add_f32_dpp v%d, v%d, v%d %s row_mask:0xf bank_mask:0xf" % (ACC, ACC, ACC, m))
assert not pw
C("---- rms = bf16(sqrt(bf16(bf16(sum / 640) + 1e-6))); cvt_pk(0, v) leaves bf16(v) as an f32")
I("v_mul_f32 v%d, %s, v%d" % (ACC, f32hex(1.0 / 640), ACC))
I("v_cvt_pk_bf16_f32 v%d, 0, v%d" % (ACC, ACC))
I("v_add_f32 v%d, 0x35860000, v%d" % (ACC, ACC), "eps = 1e-6 as the bf16 add sees it (rounded to bf16)")
I("v_cvt_pk_bf16_f32 v%d, 0, v%d" % (ACC, ACC))
I("v_sqrt_f32 v%d, v%d" % (ACC, ACC))
I("s_nop 0")
I("v_cvt_pk_bf16_f32 v%d, 0, v%d" % (ACC, ACC))
I("v_rcp_f32 v%d, v%d" % (SC, ACC), "v10 = 1 / rms")
I("s_cmp_eq_u32 s13, 0", "SCC = wave 0 (also the wait state after v_rcp)")
C("---- out = bf16(x * g / rms)")
for k in range(5):
    r = XB + 4 * k
    for j in range(4):
        p = P + 8 * k + 2 * j
        I("v_pk_mul_f32 v[%d:%d], v[%d:%d], v[%d:%d] op_sel_hi:[1,0]" % (p, p + 1, p, p + 1, SC, SC + 1))
    for j in range(4):
        p = P + 8 * k + 2 * j
        I("v_cvt_pk_bf16_f32 v%d, v%d, v%d" % (r + j, p, p + 1))
I("s_cbranch_scc1 L_store")
I("s_waitcnt vmcnt(0)", "this CU's read phase is over")
A("L_store:")
for k in range(5):
    r = XB + 4 * k
    I("global_store_dwordx4 v%d, v[%d:%d], s[8:9] offset:%d nt" % (VA, r, r + 3, 256 * k))
A("L_end:")
I("s_endpgm")
A('.section .rodata,"a"')
A(".p2align 6")
A(".amdhsa_kernel %s_kernel" % NAME)
A("  .amdhsa_next_free_vgpr %d" % NV)
A("  .amdhsa_next_free_sgpr 18")
A("  .amdhsa_accum_offset %d" % NV)
A("  .amdhsa_group_segment_fixed_size 0")
A("  .amdhsa_kernarg_size 40")
A("  .amdhsa_user_sgpr_count 2")
A("  .amdhsa_user_sgpr_kernarg_segment_ptr 1")
A("  .amdhsa_system_sgpr_workgroup_id_x 1")
A("  .amdhsa_float_denorm_mode_32 3")
A(".end_amdhsa_kernel")
open(sys.argv[1], "w").write("\n".join(L) + "\n")
```

```python
import sys, struct

NAME = "standalone__rmsnorm__sampling"
ROWB = 1280

def f32hex(x):
    return "0x%08x" % struct.unpack("<I", struct.pack("<f", x))[0]

L = []
A = L.append
def I(ins, comment=None):
    A("    %-62s; %s" % (ins, comment) if comment else "    " + ins)
def C(text):
    A("    ; " + text)

A("""; Kernarg layout for this problem (40 bytes, ptrs only, base s[0:1]):
; @launch grid=(256,1,1) block=(576,1,1) lds=2560
;
;
;
; wave when the CU's loads are done. This ordering affects speed only, never the result.""")
A('.amdgcn_target "amdgcn-amd-amdhsa--gfx950"')
A(".text")
A(".globl %s_kernel" % NAME)
A(".p2align 12      ; whole kernel inside one 4 KiB page: instruction prefetch stops at page ends")
A(".p2align 8")
A(".type %s_kernel,@function" % NAME)
A("%s_kernel:" % NAME)

VC, VA, VG, VG2, VW2, VD, ONE = 1, 2, 3, 4, 5, 6, 7
ACC, ACC2, SC = 8, 9, 10
XB, GU, P, T = 12, 32, 72, 112
NV = 120

def loads():
    for k in range(5):
        r = XB + 4 * k
        I("global_load_dwordx4 v[%d:%d], v%d, s[4:5] offset:%d nt" % (r, r + 3, VA, 256 * k))

I("s_load_dwordx8 s[4:11], s[0:1], 0", "s[4:5]=x  s[6:7]=g  s[8:9]=out")
I("s_cmpk_ge_u32 s2, 256", "workgroups past the data exit")
I("s_cbranch_scc1 L_end")
I("v_readfirstlane_b32 s13, v0", "s13 = wave id * 64")
I("v_and_b32 v%d, 15, v0" % VC)
I("v_lshlrev_b32 v%d, 4, v%d" % (VC, VC), "v1 = 16 * (lane in row): byte column of chunk 0")
I("s_and_b32 s14, s2, 7", "c")
I("s_lshr_b32 s15, s2, 3", "j")
I("s_lshl_b32 s16, s14, 2")
I("s_lshr_b32 s17, 0x88889995, s16", "row slots in use - 24, one nibble per c:")
I("s_and_b32 s17, s17, 15", "29, 33, 33, 33, 32, 32, 32, 32")
I("s_add_u32 s17, s17, 24")
I("v_lshrrev_b32 v%d, 4, v0" % VG, "v3 = row slot 0..35")
I("s_lshl_b32 s3, s14, 5")
I("s_add_u32 s3, s3, s15")
I("s_lshl_b32 s3, s3, 5", "s3 = row of slot 0 = (32c + j) * 32")
I("s_mov_b32 s12, 0xffff0000")
I("v_mov_b32 v%d, 0" % ACC)
I("v_mov_b32 v%d, 0" % ACC2)
I("v_mov_b32 v%d, 0x3f803f80" % ONE, "(1.0, 1.0) in bf16")
I("v_mul_u32_u24 v%d, %d, v%d" % (VA, ROWB, VG))
I("s_cmpk_eq_u32 s13, 512", "wave 8 goes through L_touch, so that the second half of the")
I("s_cbranch_scc1 L_touch", "code is fetched before the loads fill the memory queues")
A("L_rows:")
I("s_mulk_i32 s3, %d" % ROWB)
I("v_add3_u32 v%d, v%d, v%d, s3" % (VA, VA, VC), "v2 = byte offset of this lane's chunk 0 in x / out")
I("s_cmp_lg_u32 s13, 64")
I("s_cbranch_scc1 L_other")
C("---- wave 1: fetch g (lane l: bytes 16l..16l+15 and dword 256+l), widen, publish in LDS")
C("LDS image: f32 elements 0..3 of 8-element group n at 16n, elements 4..7 at 1280 + 16n")
I("v_and_b32 v0, 63, v0", "l")
I("v_lshlrev_b32 v%d, 4, v0" % VG)
I("v_lshlrev_b32 v%d, 2, v0" % VG2)
I("v_and_b32 v%d, 0xf0, v%d" % (VW2, VG2))
I("v_and_b32 v%d, 1, v0" % VD)
I("v_lshl_add_u32 v%d, v%d, 3, v%d" % (VW2, VD, VW2))
I("v_bfe_u32 v%d, v0, 1, 1" % VD)
I("v_mul_u32_u24 v%d, 1280, v%d" % (VD, VD))
I("v_add_u32 v%d, v%d, v%d" % (VW2, VD, VW2), "v5 = (l>>2)*16 + (l&1)*8 + ((l>>1)&1)*1280")
I("s_waitcnt lgkmcnt(0)")
I("global_load_dwordx4 v[%d:%d], v%d, s[6:7]" % (P, P + 3, VG))
I("global_load_dword v%d, v%d, s[6:7] offset:1024" % (P + 4, VG2))
loads()
I("s_waitcnt vmcnt(5)")
for j in range(5):
    I("v_lshlrev_b32 v%d, 16, v%d" % (GU + 2 * j, P + j))
    I("v_and_b32 v%d, s12, v%d" % (GU + 2 * j + 1, P + j))
I("ds_write_b128 v%d, v[%d:%d]" % (VG, GU, GU + 3))
I("ds_write_b128 v%d, v[%d:%d] offset:1280" % (VG, GU + 4, GU + 7))
I("ds_write_b64 v%d, v[%d:%d] offset:1024" % (VW2, GU + 8, GU + 9))
I("s_waitcnt lgkmcnt(0)")
I("s_branch L_join")
A("L_wave8:")
C("---- wave 8: slot 32 is row 32j + 28 + c, i.e. slot 0 would be row 32j + c - 4")
I("s_lshl_b32 s3, s15, 5")
I("s_add_u32 s3, s3, s14")
I("s_sub_u32 s3, s3, 4", "may wrap below 0; the slot term brings the sum back (mod 2^32)")
I("s_branch L_rows")
A("L_other:")
I("v_cmp_gt_u32 vcc, s17, v%d" % VG, "keep the lanes whose slot is in use")
I("s_and_b64 exec, exec, vcc")
I("s_cbranch_execz L_end")
I("s_waitcnt lgkmcnt(0)")
loads()
A("L_join:")
I("s_barrier", "g is in LDS; every remaining wave has issued its x loads")
I("global_load_dword v%d, v%d, s[6:7]" % (VD, VC), "returns after all of them (value unused)")
for k in range(5):
    for h in range(2):
        r = GU + 8 * k + 4 * h
        I("ds_read_b128 v[%d:%d], v%d offset:%d" % (r, r + 3, VC, 1280 * h + 256 * k))
I("s_cmp_eq_u32 s13, 1", "SCC = 0 up to L_touch (s13 is a multiple of 64)")
def gmul(k):
    return ["v_pk_mul_f32 v[%d:%d], v[%d:%d], v[%d:%d]" % (P + 8 * k + 2 * j, P + 8 * k + 2 * j + 1, P + 8 * k + 2 * j,
            P + 8 * k + 2 * j + 1, GU + 8 * k + 2 * j, GU + 8 * k + 2 * j + 1) for j in range(4)]
pw = []
for k in range(5):
    if k == 3:
        A("L_touch:")
        I("s_cbranch_scc1 L_wave8", "taken only on wave 8's early visit")
    C("---- chunk %d: widen to f32; square, round to bf16, accumulate in f32; x * g" % k)
    I("s_waitcnt vmcnt(%d)" % (5 - k))
    r = XB + 4 * k
    for j in range(4):
        p = P + 8 * k + 2 * j
        I("v_lshlrev_b32 v%d, 16, v%d" % (p, r + j))
        I("v_and_b32 v%d, s12, v%d" % (p + 1, r + j))
    for j in range(4):
        p = P + 8 * k + 2 * j
        I("v_pk_mul_f32 v[%d:%d], v[%d:%d], v[%d:%d]" % (T + 2 * j, T + 2 * j + 1, p, p + 1, p, p + 1))
    for j in range(4):
        I("v_cvt_pk_bf16_f32 v%d, v%d, v%d" % (T + j, T + 2 * j, T + 2 * j + 1))
    for j in range(4):
        I("v_dot2c_f32_bf16 v%d, v%d, v%d" % (ACC if j % 2 == 0 else ACC2, T + j, ONE))
    if k == 0: I("s_waitcnt lgkmcnt(0)", "g registers loaded")
    if k < 2:
        for x in gmul(k): I(x)
    else:
        pw += gmul(k)
def fill(n):
    while n > 0:
        if pw: I(pw.pop(0)); n -= 1
        else: I("s_nop %d" % (n - 1)); n = 0
C("---- row sum over the row's 16 lanes; the x * g of chunks 2..4 fill the wait states")
C("(3 after the last dot, 2 before each DPP read, 1 after v_sqrt)")
fill(3)
I("v_add_f32 v%d, v%d, v%d" % (ACC, ACC, ACC2))
for m in ["quad_perm:[1,0,3,2]", "quad_perm:[2,3,0,1]", "row_half_mirror", "row_mirror"]:
    fill(2)
    I("v_add_f32_dpp v%d, v%d, v%d %s row_mask:0xf bank_mask:0xf" % (ACC, ACC, ACC, m))
C("---- rms = bf16(sqrt(bf16(bf16(sum / 640) + 1e-6))); cvt_pk(0, v) leaves bf16(v) as an f32")
I("v_mul_f32 v%d, %s, v%d" % (ACC, f32hex(1.0 / 640), ACC))
I("v_cvt_pk_bf16_f32 v%d, 0, v%d" % (ACC, ACC))
I("v_add_f32 v%d, 0x35860000, v%d" % (ACC, ACC), "eps = 1e-6 as the bf16 add sees it (rounded to bf16)")
I("v_cvt_pk_bf16_f32 v%d, 0, v%d" % (ACC, ACC))
I("v_sqrt_f32 v%d, v%d" % (ACC, ACC))
fill(1)
assert not pw
I("v_cvt_pk_bf16_f32 v%d, 0, v%d" % (ACC, ACC))
I("v_rcp_f32 v%d, v%d" % (SC, ACC), "v10 = 1 / rms")
I("s_cmp_eq_u32 s13, 0", "SCC = wave 0 (also the wait state after v_rcp)")
C("---- out = bf16(x * g / rms)")
for k in range(5):
    r = XB + 4 * k
    for j in range(4):
        p = P + 8 * k + 2 * j
        I("v_pk_mul_f32 v[%d:%d], v[%d:%d], v[%d:%d] op_sel_hi:[1,0]" % (p, p + 1, p, p + 1, SC, SC + 1))
    for j in range(4):
        p = P + 8 * k + 2 * j
        I("v_cvt_pk_bf16_f32 v%d, v%d, v%d" % (r + j, p, p + 1))
I("s_cbranch_scc1 L_store")
I("s_waitcnt vmcnt(0)", "this CU's read phase is over")
A("L_store:")
for k in range(5):
    r = XB + 4 * k
    I("global_store_dwordx4 v%d, v[%d:%d], s[8:9] offset:%d nt" % (VA, r, r + 3, 256 * k))
A("L_end:")
I("s_endpgm")
A('.section .rodata,"a"')
A(".p2align 6")
A(".amdhsa_kernel %s_kernel" % NAME)
A("  .amdhsa_next_free_vgpr %d" % NV)
A("  .amdhsa_next_free_sgpr 18")
A("  .amdhsa_accum_offset %d" % NV)
A("  .amdhsa_group_segment_fixed_size 0")
A("  .amdhsa_kernarg_size 40")
A("  .amdhsa_user_sgpr_count 2")
A("  .amdhsa_user_sgpr_kernarg_segment_ptr 1")
A("  .amdhsa_system_sgpr_workgroup_id_x 1")
A("  .amdhsa_float_denorm_mode_32 3")
A(".end_amdhsa_kernel")
open(sys.argv[1], "w").write("\n".join(L) + "\n")
```
